```python
import torch

def _softmax(x, axis=-1):
    return torch.softmax(x, dim=axis)
def _gelu(x):
    return torch.nn.functional.gelu(x, approximate="tanh")
def _silu(x):
    return torch.nn.functional.silu(x)
def _sigmoid(x):
    return torch.sigmoid(x)
def _layernorm(x, axis=-1, eps=1e-5):
    m = x.mean(dim=axis, keepdim=True)
    v = x.var(dim=axis, keepdim=True, unbiased=False)
    return (x - m) / torch.sqrt(v + eps)
def _scatter_add(tgt, idx, src, axis=0):
    return tgt.clone().index_add_(axis, idx, src)
def _segment_sum(src, seg, n):
    out = torch.zeros((n,) + src.shape[1:], dtype=src.dtype)
    return out.index_add_(0, seg, src)
def _pad(x, pw):
    flat = tuple(v for pair in reversed(pw) for v in pair)
    return torch.nn.functional.pad(x, flat)

kernel_name = 'standalone__swiglu_ffn__decode'

def setup_inputs():

    _w = (lambda a: (lambda t: t.to(torch.bfloat16) if t.is_floating_point() else t)(torch.as_tensor(a)))
    B, S, D, F = 1, 1, 1024, 3584
    return {
        "x": _w((lambda *s: torch.randn(*s, dtype=torch.bfloat16) * 0.05)(B, S, D)),
        "w_gate": _w((lambda *s: torch.randn(*s, dtype=torch.bfloat16) * 0.05)(D, F)),
        "w_up": _w((lambda *s: torch.randn(*s, dtype=torch.bfloat16) * 0.05)(D, F)),
        "w_down": _w((lambda *s: torch.randn(*s, dtype=torch.bfloat16) * 0.05)(F, D)),
    }

def reference(x, w_gate, w_up, w_down):
    g = _silu(x @ w_gate)
    u = x @ w_up
    return (g * u) @ w_down
```

```python
import sys
NAME = "standalone__swiglu_ffn__decode"
HDR = """; Kernarg layout (56 bytes, ptrs only, base s[0:1]):
"""
def gen(stamps=False, nt=False):
    L = []
    A = L.append
    NT = " nt" if nt else ""
    A(HDR + "; @launch grid=(224,1,1) block=(256,1,1) lds=1024")
    A('.amdgcn_target "amdgcn-amd-amdhsa--gfx950"')
    A(".text")
    A(f".globl {NAME}_kernel")
    A(".p2align 8")
    A(f".type {NAME}_kernel,@function")
    A(f"{NAME}_kernel:")
    def stamp(i):
        if stamps:
            A(f"  s_memrealtime s[{40+2*i}:{41+2*i}]")
    stamp(0)
    A("  s_cmp_ge_u32 s2, 224")
    A("  s_cbranch_scc1 L_end")
    A("  s_load_dwordx8 s[8:15], s[0:1], 0")
    A("  s_load_dwordx2 s[16:17], s[0:1], 32")
    A("  s_load_dwordx2 s[18:19], s[0:1], 48")
    A("  s_and_b32 s3, s2, 7")
    A("  s_mul_i32 s3, s3, 28")
    A("  s_lshr_b32 s4, s2, 3")
    A("  s_add_u32 s3, s3, s4")
    A("  v_lshrrev_b32 v2, 1, v0")
    A("  v_and_b32 v3, 1, v0")
    A("  v_mul_u32_u24 v1, 57344, v2")
    A("  v_lshl_add_u32 v1, v3, 4, v1")
    A("  s_lshl_b32 s4, s3, 5")
    A("  s_add_u32 s4, s4, 3584")
    A("  v_add_u32 v1, s4, v1")
    A("  v_lshlrev_b32 v2, 4, v2")
    A("  s_lshl_b32 s5, s3, 15")
    A("  s_add_u32 s5, s5, 4096")
    A("  v_lshl_add_u32 v4, v0, 3, s5")
    A("  s_movk_i32 s6, 14336")
    A("  s_movk_i32 s7, 8192")
    A("  s_waitcnt lgkmcnt(0)")
    stamp(1)
    A("  s_load_dword s20, s[18:19], 0")
    A("  global_load_dwordx4 v[8:11], v2, s[8:9]")
    G = 32
    for kk in range(4):
        k = 2 * kk
        A(f"  global_load_dwordx4 v[{G+8*k}:{G+8*k+3}], v1, s[10:11] offset:-3584{NT}")
        A(f"  global_load_dwordx4 v[{G+8*k+4}:{G+8*k+7}], v1, s[12:13] offset:-3584{NT}")
        A(f"  global_load_dwordx4 v[{G+8*k+8}:{G+8*k+11}], v1, s[10:11] offset:3584{NT}")
        A(f"  global_load_dwordx4 v[{G+8*k+12}:{G+8*k+15}], v1, s[12:13] offset:3584{NT}")
        if kk < 3:
            A("  v_add_u32 v1, s6, v1")
    D = 96
    for q in range(4):
        for j in range(4):
            r = 4 * q + j
            A(f"  global_load_dwordx2 v[{D+2*r}:{D+2*r+1}], v4, s[14:15] offset:{(j-2)*2048}{NT}")
        if q < 3:
            A("  v_add_u32 v4, s7, v4")
    stamp(2)
    for i in range(16):
        A(f"  v_mov_b32 v{12+i}, 0")
    A("  s_waitcnt vmcnt(32)")
    for k in range(8):
        xr = 8 + k // 2
        if k % 2 == 0:
            A(f"  v_and_b32 v5, 0xffff, v{xr}")
            A(f"  v_lshlrev_b32 v6, 16, v{xr}")
        else:
            A(f"  v_lshrrev_b32 v5, 16, v{xr}")
            A(f"  v_and_b32 v6, 0xffff0000, v{xr}")
        A(f"  s_waitcnt vmcnt({32 - 2*k - 2})")
        for m in range(2):
            for d in range(4):
                src = G + 8 * k + 4 * m + d
                A(f"  v_dot2c_f32_bf16 v{12+8*m+2*d}, v5, v{src}")
                A(f"  v_dot2c_f32_bf16 v{12+8*m+2*d+1}, v6, v{src}")
    stamp(3)
    A("  s_nop 2")
    for i in range(8):
        A(f"  v_permlane32_swap_b32 v{12+i}, v{20+i}")
    for i in range(8):
        A(f"  v_add_f32 v{12+i}, v{12+i}, v{20+i}")
    for i in range(4):
        A(f"  v_permlane16_swap_b32 v{12+i}, v{16+i}")
    for i in range(4):
        A(f"  v_add_f32 v{12+i}, v{12+i}, v{16+i}")
    for sh in (8, 4, 2):
        for i in range(4):
            A(f"  v_add_f32_dpp v{12+i}, v{12+i}, v{12+i} row_ror:{sh} row_mask:0xf bank_mask:0xf")
    A("  v_and_b32 v5, 0xe0, v0")
    A("  v_lshlrev_b32 v5, 1, v5")
    A("  v_and_b32 v6, 16, v0")
    A("  v_lshl_add_u32 v6, v3, 5, v6")
    A("  v_add_u32 v5, v5, v6")
    A("  v_and_b32 v7, 14, v0")
    A("  v_cmp_eq_u32 vcc, 0, v7")
    A("  s_and_saveexec_b64 s[22:23], vcc")
    A("  ds_write_b128 v5, v[12:15]")
    A("  s_mov_b64 exec, s[22:23]")
    A("  v_and_b32 v5, 15, v0")
    A("  v_lshlrev_b32 v5, 2, v5")
    A("  s_waitcnt lgkmcnt(0)")
    A("  s_barrier")
    A("  ds_read2_b32 v[12:13], v5 offset0:0 offset1:32")
    A("  ds_read2_b32 v[14:15], v5 offset0:64 offset1:96")
    A("  ds_read2_b32 v[16:17], v5 offset0:16 offset1:48")
    A("  ds_read2_b32 v[18:19], v5 offset0:80 offset1:112")
    A("  s_add_u32 s20, s20, 1")
    A("  s_and_b32 s21, s20, 0x3ff")
    A("  v_mov_b32 v7, s21")
    A("  s_movk_i32 s24, 0xfc00")
    for i in range(4):
        A(f"  v_mov_b32 v{20+i}, 0")
    A("  s_waitcnt lgkmcnt(0)")
    A("  v_add_f32 v12, v12, v13")
    A("  v_add_f32 v14, v14, v15")
    A("  v_add_f32 v16, v16, v17")
    A("  v_add_f32 v18, v18, v19")
    A("  v_add_f32 v12, v12, v14")
    A("  v_add_f32 v16, v16, v18")
    A("  v_cvt_pk_bf16_f32 v12, v12, v16")
    A("  v_lshlrev_b32 v13, 16, v12")
    A("  v_and_b32 v14, 0xffff0000, v12")
    A("  v_mul_f32 v15, 0xbfb8aa3b, v13")
    A("  v_exp_f32 v15, v15")
    A("  s_nop 0")
    A("  v_add_f32 v15, 1.0, v15")
    A("  v_rcp_f32 v15, v15")
    A("  s_nop 0")
    A("  v_mul_f32 v13, v13, v15")
    A("  v_cvt_pk_bf16_f32 v13, v13, v13")
    A("  v_and_b32 v13, 0xffff0000, v13")
    A("  v_mul_f32 v13, v13, v14")
    A("  v_cvt_pk_bf16_f32 v13, v13, v13")
    A("  s_nop 0")
    for r in range(16):
        A(f"  v_readlane_b32 s{60+r}, v13, {r}")
    stamp(4)
    for r in range(16):
        A(f"  s_and_b32 s{76+r}, s{60+r}, 0xffff0000")
        A(f"  s_lshr_b32 s{60+r}, s{60+r}, 16")
    for r in range(16):
        if r % 4 == 0:
            A(f"  s_waitcnt vmcnt({12 - r})")
        A(f"  v_dot2c_f32_bf16 v20, s{60+r}, v{D+2*r}")
        A(f"  v_dot2c_f32_bf16 v21, s{76+r}, v{D+2*r}")
        A(f"  v_dot2c_f32_bf16 v22, s{60+r}, v{D+2*r+1}")
        A(f"  v_dot2c_f32_bf16 v23, s{76+r}, v{D+2*r+1}")
    stamp(5)
    A("  v_lshrrev_b32 v5, 2, v0")
    A("  v_mul_u32_u24 v5, 14336, v5")
    A("  v_and_b32 v6, 3, v0")
    A("  v_lshl_add_u32 v5, v6, 4, v5")
    A("  s_lshl_b32 s4, s2, 6")
    A("  s_add_u32 s4, s4, 4096")
    A("  v_add_u32 v5, s4, v5")
    for i in range(4):
        A(f"  v_and_or_b32 v{20+i}, v{20+i}, s24, v7")
    A("  global_store_dwordx4 v5, v[20:23], s[18:19] sc0 sc1")
    stamp(6)
    A("  s_cmp_ge_u32 s2, 64")
    A("  s_cbranch_scc1 L_fin")
    A("  s_mul_i32 s4, s2, 14336")
    A("  s_add_u32 s4, s4, 8192")
    A("  v_lshl_add_u32 v5, v0, 4, s4")
    A("  v_add_u32 v6, 8192, v5")
    A("  v_readfirstlane_b32 s25, v0")
    for i in range(4):
        A(f"  v_mov_b32 v{44+i}, v7")
    A("  s_mov_b32 s26, 0x40000")
    A("L_poll:")
    A("  global_load_dwordx4 v[32:35], v5, s[18:19] offset:-4096 sc0 sc1")
    A("  global_load_dwordx4 v[36:39], v5, s[18:19] sc0 sc1")
    A("  global_load_dwordx4 v[40:43], v6, s[18:19] offset:-4096 sc0 sc1")
    A("  s_cmp_ge_u32 s25, 128")
    A("  s_cbranch_scc1 L_skip4")
    A("  global_load_dwordx4 v[44:47], v6, s[18:19] sc0 sc1")
    A("L_skip4:")
    A("  s_waitcnt vmcnt(0)")
    A("  v_xor_b32 v12, v32, v7")
    for i in range(1, 16):
        A(f"  v_bitop3_b32 v12, v12, v{32+i}, v7 bitop3:0xf6")
    A("  v_and_b32 v12, 0x3ff, v12")
    A("  v_cmp_ne_u32 vcc, 0, v12")
    A("  s_sub_u32 s26, s26, 1")
    A("  s_cbranch_scc1 L_pollout")
    A("  s_cbranch_vccnz L_poll")
    A("L_pollout:")
    stamp(7)
    for i in range(4):
        A(f"  v_add_f32 v{32+i}, v{32+i}, v{36+i}")
        A(f"  v_add_f32 v{40+i}, v{40+i}, v{44+i}")
    for i in range(4):
        A(f"  v_add_f32 v{32+i}, v{32+i}, v{40+i}")
    A("  s_nop 1")
    A("  v_permlane32_swap_b32 v32, v34")
    A("  v_permlane32_swap_b32 v33, v35")
    A("  v_add_f32 v32, v32, v34")
    A("  v_add_f32 v33, v33, v35")
    A("  s_nop 1")
    A("  v_permlane16_swap_b32 v32, v33")
    A("  v_add_f32 v32, v32, v33")
    A("  s_nop 1")
    A("  v_add_f32_dpp v32, v32, v32 row_ror:8 row_mask:0xf bank_mask:0xf")
    A("  s_nop 1")
    A("  v_add_f32_dpp v32, v32, v32 row_ror:4 row_mask:0xf bank_mask:0xf")
    A("  v_and_b32 v5, 3, v0")
    A("  v_lshlrev_b32 v5, 6, v5")
    A("  v_and_b32 v6, 48, v0")
    A("  v_add_u32 v5, v5, v6")
    A("  v_lshrrev_b32 v6, 6, v0")
    A("  v_lshl_add_u32 v5, v6, 2, v5")
    A("  v_and_b32 v6, 12, v0")
    A("  v_cmp_eq_u32 vcc, 0, v6")
    A("  s_and_saveexec_b64 s[22:23], vcc")
    A("  ds_write_b32 v5, v32 offset:512")
    A("  s_mov_b64 exec, s[22:23]")
    A("  s_waitcnt lgkmcnt(0)")
    A("  s_barrier")
    A("  s_cmp_ge_u32 s25, 64")
    A("  s_cbranch_scc1 L_fin")
    A("  v_cmp_gt_u32 vcc, 16, v0")
    A("  s_and_saveexec_b64 s[22:23], vcc")
    A("  v_lshlrev_b32 v5, 4, v0")
    A("  ds_read_b128 v[32:35], v5 offset:512")
    A("  s_lshl_b32 s4, s2, 5")
    A("  v_lshl_add_u32 v6, v0, 1, s4")
    A("  s_waitcnt lgkmcnt(0)")
    A("  v_add_f32 v32, v32, v33")
    A("  v_add_f32 v34, v34, v35")
    A("  v_add_f32 v32, v32, v34")
    A("  v_cvt_pk_bf16_f32 v32, v32, v32")
    A("  global_store_short v6, v32, s[16:17]")
    A("  s_cmp_lg_u32 s2, 0")
    A("  s_cbranch_scc1 L_fin0")
    A("  v_mov_b32 v5, 0")
    A("  v_mov_b32 v6, s20")
    A("  global_store_dword v5, v6, s[18:19]")
    A("L_fin0:")
    A("  s_mov_b64 exec, s[22:23]")
    A("L_fin:")
    if stamps:
        A("  s_waitcnt vmcnt(0)")
        stamp(8)
        A("  s_waitcnt lgkmcnt(0)")
        A("  s_getreg_b32 s58, hwreg(HW_REG_XCC_ID)")
        A("  s_getreg_b32 s59, hwreg(HW_REG_HW_ID)")
        A("  v_lshrrev_b32 v5, 6, v0")
        A("  s_lshl_b32 s4, s2, 8")
        A("  s_add_u32 s4, s4, 0x8000000")
        A("  v_lshl_add_u32 v5, v5, 6, s4")
        for i in range(9):
            A(f"  v_mov_b32 v{32+i}, s{40+2*i}")
        A(f"  v_mov_b32 v41, s58")
        A(f"  v_mov_b32 v42, s59")
        A(f"  v_mov_b32 v43, s41")
        A("  s_mov_b64 exec, 1")
        A("  global_store_dwordx4 v5, v[32:35], s[18:19]")
        A("  global_store_dwordx4 v5, v[36:39], s[18:19] offset:16")
        A("  global_store_dwordx4 v5, v[40:43], s[18:19] offset:32")
    A("L_end:")
    A("  s_endpgm")
    A('.section .rodata,"a"')
    A(".p2align 6")
    A(f".amdhsa_kernel {NAME}_kernel")
    A("  .amdhsa_next_free_vgpr 128")
    A("  .amdhsa_next_free_sgpr 96")
    A("  .amdhsa_accum_offset 128")
    A("  .amdhsa_group_segment_fixed_size 0")
    A("  .amdhsa_kernarg_size 56")
    A("  .amdhsa_user_sgpr_count 2")
    A("  .amdhsa_user_sgpr_kernarg_segment_ptr 1")
    A("  .amdhsa_system_sgpr_workgroup_id_x 1")
    A(".end_amdhsa_kernel")
    return "\n".join(L) + "\n"

if __name__ == "__main__":
    out = sys.argv[1]
    opts = sys.argv[2:]
    open(out, "w").write(gen(stamps="stamps" in opts, nt="nt" in opts))
```

```python
import sys
NAME = "standalone__swiglu_ffn__decode"
HDR = """; Kernarg layout (56 bytes, ptrs only, base s[0:1]):
"""
def gen(stamps=False, nt=False, probe=None, lat=0):
    L = []
    A = L.append
    NT = " nt" if nt else ""
    A(HDR + "; @launch grid=(224,1,1) block=(256,1,1) lds=1024")
    A('.amdgcn_target "amdgcn-amd-amdhsa--gfx950"')
    A(".text")
    A(f".globl {NAME}_kernel")
    A(".p2align 8")
    A(f".type {NAME}_kernel,@function")
    A(f"{NAME}_kernel:")
    def stamp(i):
        if stamps or probe:
            A(f"  s_memrealtime s[{40+2*i}:{41+2*i}]")
    stamp(0)
    A("  s_cmp_ge_u32 s2, 224")
    A("  s_cbranch_scc1 L_end")
    A("  s_load_dwordx8 s[8:15], s[0:1], 0")
    A("  s_load_dwordx2 s[16:17], s[0:1], 32")
    A("  s_load_dwordx2 s[18:19], s[0:1], 48")
    A("  s_and_b32 s3, s2, 7")
    A("  s_mul_i32 s3, s3, 28")
    A("  s_lshr_b32 s4, s2, 3")
    A("  s_add_u32 s3, s3, s4")
    A("  v_lshrrev_b32 v2, 1, v0")
    A("  v_and_b32 v3, 1, v0")
    A("  v_mul_u32_u24 v1, 57344, v2")
    A("  v_lshl_add_u32 v1, v3, 4, v1")
    A("  s_lshl_b32 s4, s3, 5")
    A("  s_add_u32 s4, s4, 3584")
    A("  v_add_u32 v1, s4, v1")
    A("  v_lshlrev_b32 v2, 4, v2")
    A("  s_lshl_b32 s5, s3, 15")
    A("  s_add_u32 s5, s5, 4096")
    A("  v_lshl_add_u32 v4, v0, 3, s5")
    A("  s_movk_i32 s6, 14336")
    A("  s_movk_i32 s7, 8192")
    A("  s_waitcnt lgkmcnt(0)")
    stamp(1)
    if lat == 1:
        A(f"  global_load_dwordx4 v[8:11], v1, s[10:11] offset:-3584{NT}")
        A("  s_waitcnt vmcnt(0)")
        stamp(9)
    if lat == 2:
        A(f"  global_load_dwordx4 v[8:11], v1, s[10:11] offset:-3584{NT}")
        A("  s_waitcnt vmcnt(0)")
        stamp(1)
        A(f"  global_load_dwordx4 v[8:11], v1, s[10:11] offset:3584{NT}")
        A("  s_waitcnt vmcnt(0)")
        stamp(9)
    A("  s_load_dword s20, s[18:19], 0")
    A("  global_load_dwordx4 v[8:11], v2, s[8:9]")
    G = 32
    for kk in range(4):
        k = 2 * kk
        A(f"  global_load_dwordx4 v[{G+8*k}:{G+8*k+3}], v1, s[10:11] offset:-3584{NT}")
        A(f"  global_load_dwordx4 v[{G+8*k+4}:{G+8*k+7}], v1, s[12:13] offset:-3584{NT}")
        A(f"  global_load_dwordx4 v[{G+8*k+8}:{G+8*k+11}], v1, s[10:11] offset:3584{NT}")
        A(f"  global_load_dwordx4 v[{G+8*k+12}:{G+8*k+15}], v1, s[12:13] offset:3584{NT}")
        if kk < 3:
            A("  v_add_u32 v1, s6, v1")
    D = 96
    for q in range(4):
        for j in range(4):
            r = 4 * q + j
            A(f"  global_load_dwordx2 v[{D+2*r}:{D+2*r+1}], v4, s[14:15] offset:{(j-2)*2048}{NT}")
        if q < 3:
            A("  v_add_u32 v4, s7, v4")
    stamp(2)
    for i in range(16):
        A(f"  v_mov_b32 v{12+i}, 0")
    A("  s_waitcnt vmcnt(32)")
    for k in range(8):
        xr = 8 + k // 2
        if k % 2 == 0:
            A(f"  v_and_b32 v5, 0xffff, v{xr}")
            A(f"  v_lshlrev_b32 v6, 16, v{xr}")
        else:
            A(f"  v_lshrrev_b32 v5, 16, v{xr}")
            A(f"  v_and_b32 v6, 0xffff0000, v{xr}")
        A(f"  s_waitcnt vmcnt({32 - 2*k - 2})")
        for m in range(2):
            for d in range(4):
                src = G + 8 * k + 4 * m + d
                A(f"  v_dot2c_f32_bf16 v{12+8*m+2*d}, v5, v{src}")
                A(f"  v_dot2c_f32_bf16 v{12+8*m+2*d+1}, v6, v{src}")
    stamp(3)
    A("  s_nop 2")
    for i in range(8):
        A(f"  v_permlane32_swap_b32 v{12+i}, v{20+i}")
    for i in range(8):
        A(f"  v_add_f32 v{12+i}, v{12+i}, v{20+i}")
    for i in range(4):
        A(f"  v_permlane16_swap_b32 v{12+i}, v{16+i}")
    for i in range(4):
        A(f"  v_add_f32 v{12+i}, v{12+i}, v{16+i}")
    for sh in (8, 4, 2):
        for i in range(4):
            A(f"  v_add_f32_dpp v{12+i}, v{12+i}, v{12+i} row_ror:{sh} row_mask:0xf bank_mask:0xf")
    A("  v_and_b32 v5, 0xe0, v0")
    A("  v_lshlrev_b32 v5, 1, v5")
    A("  v_and_b32 v6, 16, v0")
    A("  v_lshl_add_u32 v6, v3, 5, v6")
    A("  v_add_u32 v5, v5, v6")
    A("  v_and_b32 v7, 14, v0")
    A("  v_cmp_eq_u32 vcc, 0, v7")
    A("  s_and_saveexec_b64 s[22:23], vcc")
    A("  ds_write_b128 v5, v[12:15]")
    A("  s_mov_b64 exec, s[22:23]")
    A("  v_and_b32 v5, 15, v0")
    A("  v_lshlrev_b32 v5, 2, v5")
    A("  s_waitcnt lgkmcnt(0)")
    A("  s_barrier")
    A("  ds_read2_b32 v[12:13], v5 offset0:0 offset1:32")
    A("  ds_read2_b32 v[14:15], v5 offset0:64 offset1:96")
    A("  ds_read2_b32 v[16:17], v5 offset0:16 offset1:48")
    A("  ds_read2_b32 v[18:19], v5 offset0:80 offset1:112")
    A("  s_add_u32 s20, s20, 1")
    A("  s_and_b32 s21, s20, 0x3ff")
    A("  v_mov_b32 v7, s21")
    A("  s_movk_i32 s24, 0xfc00")
    for i in range(4):
        A(f"  v_mov_b32 v{20+i}, 0")
    A("  s_waitcnt lgkmcnt(0)")
    A("  v_add_f32 v12, v12, v13")
    A("  v_add_f32 v14, v14, v15")
    A("  v_add_f32 v16, v16, v17")
    A("  v_add_f32 v18, v18, v19")
    A("  v_add_f32 v12, v12, v14")
    A("  v_add_f32 v16, v16, v18")
    A("  v_cvt_pk_bf16_f32 v12, v12, v16")
    A("  v_lshlrev_b32 v13, 16, v12")
    A("  v_and_b32 v14, 0xffff0000, v12")
    A("  v_mul_f32 v15, 0xbfb8aa3b, v13")
    A("  v_exp_f32 v15, v15")
    A("  s_nop 0")
    A("  v_add_f32 v15, 1.0, v15")
    A("  v_rcp_f32 v15, v15")
    A("  s_nop 0")
    A("  v_mul_f32 v13, v13, v15")
    A("  v_cvt_pk_bf16_f32 v13, v13, v13")
    A("  v_and_b32 v13, 0xffff0000, v13")
    A("  v_mul_f32 v13, v13, v14")
    A("  v_cvt_pk_bf16_f32 v13, v13, v13")
    A("  s_nop 0")
    for r in range(16):
        A(f"  v_readlane_b32 s{60+r}, v13, {r}")
    stamp(4)
    for r in range(16):
        A(f"  s_and_b32 s{76+r}, s{60+r}, 0xffff0000")
        A(f"  s_lshr_b32 s{60+r}, s{60+r}, 16")
    for r in range(16):
        if r % 4 == 0:
            A(f"  s_waitcnt vmcnt({12 - r})")
        A(f"  v_dot2c_f32_bf16 v20, s{60+r}, v{D+2*r}")
        A(f"  v_dot2c_f32_bf16 v21, s{76+r}, v{D+2*r}")
        A(f"  v_dot2c_f32_bf16 v22, s{60+r}, v{D+2*r+1}")
        A(f"  v_dot2c_f32_bf16 v23, s{76+r}, v{D+2*r+1}")
    stamp(5)
    A("  v_lshrrev_b32 v5, 2, v0")
    A("  v_mul_u32_u24 v5, 14336, v5")
    A("  v_and_b32 v6, 3, v0")
    A("  v_lshl_add_u32 v5, v6, 4, v5")
    A("  s_lshl_b32 s4, s2, 6")
    A("  s_add_u32 s4, s4, 4096")
    A("  v_add_u32 v5, s4, v5")
    for i in range(4):
        A(f"  v_and_or_b32 v{20+i}, v{20+i}, s24, v7")
    A("  global_store_dwordx4 v5, v[20:23], s[18:19] sc0 sc1")
    stamp(6)
    A("  s_cmp_ge_u32 s2, 64")
    A("  s_cbranch_scc1 L_fin")
    A("  s_mul_i32 s4, s2, 14336")
    A("  s_add_u32 s4, s4, 8192")
    A("  v_lshl_add_u32 v5, v0, 4, s4")
    A("  v_add_u32 v6, 8192, v5")
    A("  v_readfirstlane_b32 s25, v0")
    for i in range(4):
        A(f"  v_mov_b32 v{44+i}, v7")
    A("  s_mov_b32 s26, 0x40000")
    A("L_poll:")
    A("  global_load_dwordx4 v[32:35], v5, s[18:19] offset:-4096 sc0 sc1")
    A("  global_load_dwordx4 v[36:39], v5, s[18:19] sc0 sc1")
    A("  global_load_dwordx4 v[40:43], v6, s[18:19] offset:-4096 sc0 sc1")
    A("  s_cmp_ge_u32 s25, 128")
    A("  s_cbranch_scc1 L_skip4")
    A("  global_load_dwordx4 v[44:47], v6, s[18:19] sc0 sc1")
    A("L_skip4:")
    A("  s_waitcnt vmcnt(0)")
    A("  v_xor_b32 v12, v32, v7")
    for i in range(1, 16):
        A(f"  v_bitop3_b32 v12, v12, v{32+i}, v7 bitop3:0xf6")
    A("  v_and_b32 v12, 0x3ff, v12")
    A("  v_cmp_ne_u32 vcc, 0, v12")
    A("  s_sub_u32 s26, s26, 1")
    A("  s_cbranch_scc1 L_pollout")
    A("  s_cbranch_vccnz L_poll")
    A("L_pollout:")
    stamp(7)
    for i in range(4):
        A(f"  v_add_f32 v{32+i}, v{32+i}, v{36+i}")
        A(f"  v_add_f32 v{40+i}, v{40+i}, v{44+i}")
    for i in range(4):
        A(f"  v_add_f32 v{32+i}, v{32+i}, v{40+i}")
    A("  s_nop 1")
    A("  v_permlane32_swap_b32 v32, v34")
    A("  v_permlane32_swap_b32 v33, v35")
    A("  v_add_f32 v32, v32, v34")
    A("  v_add_f32 v33, v33, v35")
    A("  s_nop 1")
    A("  v_permlane16_swap_b32 v32, v33")
    A("  v_add_f32 v32, v32, v33")
    A("  s_nop 1")
    A("  v_add_f32_dpp v32, v32, v32 row_ror:8 row_mask:0xf bank_mask:0xf")
    A("  s_nop 1")
    A("  v_add_f32_dpp v32, v32, v32 row_ror:4 row_mask:0xf bank_mask:0xf")
    A("  v_and_b32 v5, 3, v0")
    A("  v_lshlrev_b32 v5, 6, v5")
    A("  v_and_b32 v6, 48, v0")
    A("  v_add_u32 v5, v5, v6")
    A("  v_lshrrev_b32 v6, 6, v0")
    A("  v_lshl_add_u32 v5, v6, 2, v5")
    A("  v_and_b32 v6, 12, v0")
    A("  v_cmp_eq_u32 vcc, 0, v6")
    A("  s_and_saveexec_b64 s[22:23], vcc")
    A("  ds_write_b32 v5, v32 offset:512")
    A("  s_mov_b64 exec, s[22:23]")
    A("  s_waitcnt lgkmcnt(0)")
    A("  s_barrier")
    A("  s_cmp_ge_u32 s25, 64")
    A("  s_cbranch_scc1 L_fin")
    A("  v_cmp_gt_u32 vcc, 16, v0")
    A("  s_and_saveexec_b64 s[22:23], vcc")
    A("  v_lshlrev_b32 v5, 4, v0")
    A("  ds_read_b128 v[32:35], v5 offset:512")
    A("  s_lshl_b32 s4, s2, 5")
    A("  v_lshl_add_u32 v6, v0, 1, s4")
    A("  s_waitcnt lgkmcnt(0)")
    A("  v_add_f32 v32, v32, v33")
    A("  v_add_f32 v34, v34, v35")
    A("  v_add_f32 v32, v32, v34")
    A("  v_cvt_pk_bf16_f32 v32, v32, v32")
    A("  global_store_short v6, v32, s[16:17]")
    A("  s_cmp_lg_u32 s2, 0")
    A("  s_cbranch_scc1 L_fin0")
    A("  v_mov_b32 v5, 0")
    A("  v_mov_b32 v6, s20")
    A("  global_store_dword v5, v6, s[18:19]")
    if probe:
        i, j = probe
        A("  s_waitcnt vmcnt(0)")
        stamp(8)
        A("  s_waitcnt lgkmcnt(0)")
        A(f"  s_sub_u32 s4, s{40+2*j}, s{40+2*i}")
        A("  s_min_u32 s4, s4, 3000")
        A("  s_mul_i32 s4, s4, 10")
        A("L_spin:")
        A("  s_sleep 1")
        A("  s_memrealtime s[6:7]")
        A("  s_waitcnt lgkmcnt(0)")
        A("  s_sub_u32 s5, s6, s56")
        A("  s_cmp_lt_u32 s5, s4")
        A("  s_cbranch_scc1 L_spin")
    A("L_fin0:")
    A("  s_mov_b64 exec, s[22:23]")
    A("L_fin:")
    if stamps:
        A("  s_waitcnt vmcnt(0)")
        stamp(8)
        A("  s_waitcnt lgkmcnt(0)")
        A("  s_getreg_b32 s58, hwreg(HW_REG_XCC_ID)")
        A("  s_getreg_b32 s59, hwreg(HW_REG_HW_ID)")
        A("  v_lshrrev_b32 v5, 6, v0")
        A("  s_lshl_b32 s4, s2, 8")
        A("  s_add_u32 s4, s4, 0x8000000")
        A("  v_lshl_add_u32 v5, v5, 6, s4")
        for i in range(9):
            A(f"  v_mov_b32 v{32+i}, s{40+2*i}")
        A(f"  v_mov_b32 v41, s58")
        A(f"  v_mov_b32 v42, s59")
        A(f"  v_mov_b32 v43, s41")
        A("  s_mov_b64 exec, 1")
        A("  global_store_dwordx4 v5, v[32:35], s[18:19]")
        A("  global_store_dwordx4 v5, v[36:39], s[18:19] offset:16")
        A("  global_store_dwordx4 v5, v[40:43], s[18:19] offset:32")
    A("L_end:")
    A("  s_endpgm")
    A('.section .rodata,"a"')
    A(".p2align 6")
    A(f".amdhsa_kernel {NAME}_kernel")
    A("  .amdhsa_next_free_vgpr 128")
    A("  .amdhsa_next_free_sgpr 96")
    A("  .amdhsa_accum_offset 128")
    A("  .amdhsa_group_segment_fixed_size 0")
    A("  .amdhsa_kernarg_size 56")
    A("  .amdhsa_user_sgpr_count 2")
    A("  .amdhsa_user_sgpr_kernarg_segment_ptr 1")
    A("  .amdhsa_system_sgpr_workgroup_id_x 1")
    A(".end_amdhsa_kernel")
    return "\n".join(L) + "\n"

if __name__ == "__main__":
    out = sys.argv[1]
    opts = sys.argv[2:]
    probe=None; lat=0
    for o in opts:
        if o.startswith("probe="):
            probe=tuple(int(x) for x in o[6:].split(","))
        if o.startswith("lat="):
            lat=int(o[4:])
    open(out, "w").write(gen(stamps="stamps" in opts, nt="nt" in opts, probe=probe, lat=lat))
```

```python
import sys
from kcommon import *
CEN_OFF = 0x400
X1_OFF = 0x1000
X2_OFF = 0x40000
X1C_OFF = 0x100000
def gen(stamps=False, W1N=6, W2N=6, ldf="nt", x1s="sc1", x2s="", pf="sc1", midpoll=3, spin=0x20000,
        pre2step=3, cststep=1, censtep=10, force=None, helper=1, align=12, spread=1, pipe2=1, outf="", g2=None, shrink1=0, early=None, epos=4, bar=0, pause=0, copies=1):
    k = K(224, 320 if helper else 256, 0, stamps=stamps, sbase=64, align=align)
    TM1, TM2 = 0xff, 0x3ff
    W1, WD = 32, 96
    k.stamp(0)
    k(f"""
    s_load_dwordx8 s[8:15], s[0:1], 0
    s_load_dwordx2 s[18:19], s[0:1], 48
    s_load_dwordx2 s[16:17], s[0:1], 32
    v_readfirstlane_b32 s24, v0
    """)
    if helper:
        k("""
        s_cmpk_lt_u32 s24, 256
        s_cselect_b64 exec, -1, 0
        s_cbranch_execz L_t1
        """)
    k(f"""
    s_cmp_ge_u32 s2, 224
    s_cbranch_scc1 L_end
    s_and_b32 s20, s2, 7
    s_lshr_b32 s21, s2, 3
    v_and_b32 v5, 7, v0
    v_bfe_u32 v6, v0, 3, 3
    s_lshr_b32 s25, s24, 7
    s_add_u32 s22, s21, s25
    s_cmp_eq_u32 s22, 28
    s_cselect_b32 s22, 0, s22
    s_and_b32 s26, s24, 64
    s_mul_i32 s3, s20, {128*7168}
    s_lshl_b32 s4, s22, 8
    s_add_u32 s3, s3, s4
    s_lshl_b32 s4, s26, 1
    s_add_u32 s3, s3, s4
    s_addk_i32 s3, 3584
    v_mul_u32_u24 v1, {16*7168}, v6
    v_lshl_add_u32 v1, v5, 4, v1
    v_add_u32 v1, s3, v1
    s_lshl_b32 s35, s20, 8
    v_lshl_add_u32 v3, v6, 5, s35
    s_movk_i32 s6, 14336
    s_cmp_eq_u32 s25, 0
    s_waitcnt lgkmcnt(0)
    s_cselect_b32 s10, s10, s12
    s_cselect_b32 s11, s11, s13
    """)
    k.stamp(1)
    seq = []
    def vm(name, text):
        seq.append(name); k(text)
    def wait_for(name):
        n = len(seq) - 1 - seq.index(name)
        k(f"s_waitcnt vmcnt({n})")
    vm("x0", "global_load_dwordx4 v[8:11], v3, s[8:9]")
    vm("x1", "global_load_dwordx4 v[12:15], v3, s[8:9] offset:16")
    def issue(n):
        if n < 16:
            off = -3584 if n % 2 == 0 else 3584
            vm(n, f"global_load_dwordx4 v[{W1+4*n}:{W1+4*n+3}], v1, s[10:11] offset:{off} {ldf}")
            if n % 2 == 1 and n < 15:
                k("v_add_u32 v1, s6, v1")
        else:
            t = n - 16
            vm(n, f"global_load_dwordx4 v[{WD+4*t}:{WD+4*t+3}], v2, s[14:15] {ldf}")
            if t < 7:
                k("v_add_u32 v2, s7, v2")
    gate = [n - W1N if n < 16 else max(n - W2N, 15 - W1N) for n in range(24)]
    if g2 is not None:
        gl = [int(c, 36) for c in str(g2).lstrip("x")]
        assert len(gl) == 8
        gate[16:] = gl
    order = list(range(24))
    if early is not None:
        order = []
        e = 0
        for n in range(16):
            order.append(n)
            if n >= epos and e < early:
                order.append(16 + e); e += 1
        assert e == early
        npre = len(order)
        order += list(range(16 + early, 24))
        gate = {}
        for pos, n in enumerate(order):
            if pos >= npre + pause: gate[n] = 99
            elif pos < W1N: gate[n] = -1
            else: gate[n] = order[pos - W1N]
    nxt = 0
    while nxt < 16 and order[nxt] < 16 and gate[order[nxt]] < 0:
        issue(order[nxt]); nxt += 1
    k(f"""
    s_load_dword s23, s[18:19], 0
    s_lshl_b32 s3, s21, 8
    s_add_u32 s27, s3, s24
    s_lshl_b32 s3, s27, 10
    s_add_u32 s3, s3, s35
    v_bfe_u32 v7, v0, 4, 2
    v_and_b32 v16, 15, v0
    v_lshlrev_b32 v2, 11, v7
    v_lshl_add_u32 v2, v16, 4, v2
    v_add_u32 v2, s3, v2
    s_movk_i32 s7, 8192
    v_and_b32 v17, 1, v0
    v_lshlrev_b32 v17, 4, v17
    s_mov_b32 s4, 0xffff
    v_lshlrev_b32 v17, v17, s4
    v_lshrrev_b32 v18, 1, v5
    v_cmp_eq_u32 s[36:37], 0, v18
    v_cmp_eq_u32 s[38:39], 1, v18
    v_cmp_eq_u32 s[40:41], 2, v18
    v_cmp_eq_u32 vcc, 3, v18
    v_cndmask_b32 v28, 0, v17, s[36:37]
    v_cndmask_b32 v29, 0, v17, s[38:39]
    v_cndmask_b32 v30, 0, v17, s[40:41]
    v_cndmask_b32 v31, 0, v17, vcc
    s_mov_b32 s30, 0x01000100
    s_mov_b32 s31, 0x03020302
    """)
    k(f"""
    s_lshl_b32 s3, s22, 1
    s_add_u32 s3, s3, s25
    s_lshl_b32 s3, s3, 3
    s_add_u32 s3, s3, s20
    s_lshl_b32 s3, s3, 7
    s_add_u32 s3, s3, s26
    s_lshl_b32 s3, s3, {2 if copies == 1 else 5}
    s_add_u32 s3, s3, {X1_OFF if copies == 1 else X1C_OFF}
    v_and_b32 v19, 16, v0
    v_lshl_add_u32 v20, v5, 5, v19
    v_add_u32 v20, s3, v20
    """)
    if copies == 1:
        k(f"""
        s_lshl_b32 s3, s21, 12
        s_add_u32 s3, s3, s24
        s_lshl_b32 s3, s3, 1
        s_addk_i32 s3, {X1_OFF + 2048}
        v_lshlrev_b32 v21, 9, v6
        v_lshl_add_u32 v21, v5, 4, v21
        v_add_u32 v21, s3, v21
        """)
    else:
        k(f"""
        s_lshl_b32 s3, s21, 16
        s_lshl_b32 s4, s25, 11
        s_add_u32 s3, s3, s4
        s_lshl_b32 s4, s26, 1
        s_add_u32 s3, s3, s4
        s_lshr_b32 s4, s20, {(8//copies).bit_length()-1}
        s_lshl_b32 s4, s4, 8
        s_add_u32 s3, s3, s4
        s_add_u32 s3, s3, {X1C_OFF}
        v_lshlrev_b32 v21, 12, v6
        v_lshl_add_u32 v21, v5, 4, v21
        v_add_u32 v21, s3, v21
        v_add_u32 v138, 0x8000, v21
        """)
    k(f"""
    s_add_u32 s28, s20, {X2_OFF >> 16}
    s_lshl_b32 s28, s28, 16
    s_lshr_b32 s4, s27, 2
    s_add_u32 s3, s28, s4
    v_lshlrev_b32 v22, 12, v16
    v_lshl_add_u32 v22, v19, 7, v22
    v_add_u32 v22, s3, v22
    """)
    if spread:
        k("""
        s_lshr_b32 s4, s24, 6
        s_mul_i32 s4, s4, 28
        s_add_u32 s27, s21, s4
        """)
    else:
        k("s_lshr_b32 s27, s27, 6")
    k(f"""
    s_and_b32 s4, s27, 31
    s_lshl_b32 s3, s4, 3
    s_add_u32 s3, s3, s35
    v_lshl_add_u32 v7, v7, 1, s3
    s_lshl_b32 s4, s4, 11
    s_add_u32 s4, s4, s28
    v_and_b32 v3, 63, v0
    v_lshl_add_u32 v130, v3, 4, s4
    v_min_u32 v131, 47, v3
    v_lshl_add_u32 v131, v131, 4, s4
    v_cmp_gt_u32 vcc, 48, v3
    v_min_u32 v132, 27, v3
    s_lshl_b32 s3, s20, 7
    v_cndmask_b32 v135, 0, 1.0, vcc
    v_lshl_add_u32 v132, v132, 2, s3
    s_lshl_b32 s4, s21, 2
    s_add_u32 s3, s3, s4
    v_mov_b32 v133, s3
    s_getreg_b32 s33, hwreg(HW_REG_XCC_ID, 0, 4)
    s_movk_i32 s29, {hex(0xffff ^ TM1)}
    s_movk_i32 s32, {hex(0xffff ^ TM2)}
    """)
    k.stamp(2)
    wait_for("x1")
    for i in range(16):
        k(f"v_perm_b32 v4, v{8+i//2}, v{8+i//2}, s{30+(i&1)}")
        for d in range(4):
            k(f"v_and_b32 v{16+d}, v4, v{28+d}")
        wait_for(i)
        did = False
        if early is None:
            while nxt < 24 and gate[nxt] <= i and (i < 15 or not did):
                issue(nxt); nxt += 1; did = True
        else:
            while nxt < 24 and gate[order[nxt]] != 99 and (gate[order[nxt]] < 0 or order.index(gate[order[nxt]]) <= order.index(i)):
                issue(order[nxt]); nxt += 1; did = True
        if i == pre2step:
            vm("pre2a", f"global_load_dword v128, v130, s[18:19] {pf}")
            vm("pre2b", f"global_load_dword v128, v131, s[18:19] offset:1024 {pf}"); did = True
        if i == censtep:
            vm("cen", f"global_load_dword v129, v132, s[18:19] offset:{CEN_OFF} {pf}"); did = True
        if not did:
            k("s_nop 0")
        c = "0" if i == 0 else "v[24:27]"
        k(f"v_mfma_f32_16x16x32_bf16 v[24:27], v[16:19], v[{W1+4*i}:{W1+4*i+3}], {c}")
        if i == cststep:
            k(f"""
            s_waitcnt lgkmcnt(0)
            s_add_u32 s23, s23, 1
            s_lshl_b32 s4, s23, 4
            s_or_b32 s33, s33, s4
            v_mov_b32 v134, s33
            s_and_b32 s4, s23, 63
            s_addk_i32 s4, 0x60
            v_mov_b32 v23, s4
            s_and_b32 s4, s23, 255
            s_addk_i32 s4, 0x180
            v_mov_b32 v136, s4
            """)
            vm("cst", f"global_store_dword v133, v134, s[18:19] offset:{CEN_OFF}")
    k.stamp(3)
    k("s_nop 7")
    for r in range(4):
        k(f"v_permlane32_swap_b32 v{24+r}, v{16+r}")
    for r in range(4):
        k(f"v_add_f32_dpp v{24+r}, v{16+r}, v{24+r} row_ror:8 row_mask:0xf bank_mask:0xf")
    k("s_mov_b64 exec, 0x00ff00ff")
    for r in range(4):
        k(f"v_and_or_b32 v{24+r}, v{24+r}, s29, v23")
    for cp in range(copies):
        vm(f"x1st{cp}", f"global_store_dwordx4 v20, v[24:27], s[18:19] offset:{256*cp} {x1s}")
    k("s_mov_b64 exec, -1")
    k.stamp(4)
    if bar: k("s_barrier")
    while nxt < 24:
        if early is None and gate[nxt] > 15:
            wait_for(gate[nxt])
        issue(order[nxt]); nxt += 1
    k(f"s_mov_b32 s5, {spin}")
    wait_for("cen")
    k("v_cmp_ne_u32 s[36:37], s33, v129")
    wait_for(24 - midpoll)
    if stamps: k.stamp(2)
    NEQ = "bitop3:0x7e"
    k(f"""
    L_p1:
    global_load_dwordx4 v[32:35], v21, s[18:19] offset:{-2048 if copies == 1 else 0} {pf}
    global_load_dwordx4 v[36:39], {"v21" if copies == 1 else "v138"}, s[18:19] offset:{2048 if copies == 1 else 0} {pf}
    s_sub_u32 s5, s5, 1
    s_cbranch_scc1 L_end
    s_waitcnt vmcnt(0)
    """)
    k.stamp(5)
    k(f"""
    v_permlane32_swap_b32 v32, v34
    v_permlane32_swap_b32 v33, v35
    v_permlane32_swap_b32 v36, v38
    v_permlane32_swap_b32 v37, v39
    v_add_f32 v48, v32, v34
    v_add_f32 v49, v33, v35
    v_add_f32 v50, v36, v38
    v_add_f32 v51, v37, v39
    v_bitop3_b32 v52, v32, v33, v23 {NEQ}
    v_permlane16_swap_b32 v48, v49
    v_bitop3_b32 v53, v34, v35, v23 {NEQ}
    v_permlane16_swap_b32 v50, v51
    v_add_f32 v48, v48, v49
    v_add_f32 v50, v50, v51
    v_bitop3_b32 v54, v36, v37, v23 {NEQ}
    v_add_f32_dpp v48, v48, v48 row_ror:8 row_mask:0xf bank_mask:0xf
    v_add_f32_dpp v50, v50, v50 row_ror:8 row_mask:0xf bank_mask:0xf
    v_cvt_pk_bf16_f32 v48, v48, v50
    v_lshlrev_b32 v49, 16, v48
    v_mul_f32 v50, 0xbfb8aa3b, v49
    v_exp_f32 v50, v50
    v_bitop3_b32 v55, v38, v39, v23 {NEQ}
    v_add_f32 v50, 1.0, v50
    v_rcp_f32 v50, v50
    v_or3_b32 v52, v52, v53, v54
    v_mul_f32 v49, v49, v50
    v_cvt_pk_bf16_f32 v49, v49, v49
    v_and_b32 v48, 0xffff0000, v48
    v_and_b32 v49, 0xffff0000, v49
    v_mul_f32 v49, v49, v48
    v_cvt_pk_bf16_f32 v49, v49, v49
    v_bitop3_b32 v52, v52, v55, s29 bitop3:0x54
    v_cmp_ne_u32 vcc, 0, v52
    """)
    k.stamp(6)
    for t in range(8):
        a = 40 + 4 * (t & 1)
        for d in range(4):
            k(f"v_and_b32_dpp v{a+d}, v49, v{28+d} row_newbcast:{t} row_mask:0xf bank_mask:0xf")
        if t == 0:
            k("s_cbranch_vccnz L_p1")
        if t > 0:
            pa = 40 + 4 * ((t - 1) & 1)
            c = "0" if t == 1 else "v[24:27]"
            k(f"v_mfma_f32_16x16x32_bf16 v[24:27], v[{pa}:{pa+3}], v[{WD+4*(t-1)}:{WD+4*(t-1)+3}], {c}")
    k("s_mov_b64 vcc, s[36:37]")
    k(f"v_mfma_f32_16x16x32_bf16 v[24:27], v[44:47], v[{WD+28}:{WD+31}], v[24:27]")
    if stamps: k("s_mov_b32 s84, s5")
    if force == "mix":
        k("s_bitcmp1_b32 s21, 0")
        k("s_cselect_b64 vcc, -1, vcc")
    if force == "slow":
        k("s_mov_b64 vcc, -1")
    k(f"""
    s_mov_b32 exec_hi, 0
    s_cmp_ge_u32 s27, 32
    s_mov_b32 s5, {spin}
    s_nop 4
    """)
    for r in range(4):
        k(f"v_and_or_b32 v{24+r}, v{24+r}, s32, v136")
    k(f"""
    s_cbranch_vccnz L_slow
    global_store_dwordx4 v22, v[24:27], s[18:19] {x2s}
    L_st:
    """)
    k.stamp(7)
    k(f"""
    s_cbranch_scc1 L_fin
    s_mov_b32 exec_hi, -1
    """)
    def poll2(a):
        k(f"""
        global_load_dwordx4 v[{a}:{a+3}], v130, s[18:19] {pf}
        global_load_dwordx4 v[{a+4}:{a+7}], v131, s[18:19] offset:1024 {pf}
        """)
    def red2(a):
        k(f"""
        v_fma_f32 v48, v{a+4}, v135, v{a}
        v_fma_f32 v50, v{a+6}, v135, v{a+2}
        v_fma_f32 v49, v{a+5}, v135, v{a+1}
        v_fma_f32 v51, v{a+7}, v135, v{a+3}
        v_bitop3_b32 v52, v{a}, v{a+1}, v136 {NEQ}
        v_permlane32_swap_b32 v48, v50
        v_permlane32_swap_b32 v49, v51
        v_add_f32 v48, v48, v50
        v_add_f32 v49, v49, v51
        v_bitop3_b32 v53, v{a+2}, v{a+3}, v136 {NEQ}
        v_bitop3_b32 v54, v{a+4}, v{a+5}, v136 {NEQ}
        v_permlane16_swap_b32 v48, v49
        v_add_f32 v48, v48, v49
        v_bitop3_b32 v55, v{a+6}, v{a+7}, v136 {NEQ}
        v_or3_b32 v52, v52, v53, v54
        v_add_f32_dpp v48, v48, v48 row_ror:8 row_mask:0xf bank_mask:0xf
        v_bitop3_b32 v52, v52, v55, s32 bitop3:0x54
        v_cmp_ne_u32 vcc, 0, v52
        v_add_f32_dpp v48, v48, v48 row_ror:4 row_mask:0xf bank_mask:0xf
        """)
    if pipe2:
        poll2(32)
        k("L_p2:")
        poll2(56)
        k("s_waitcnt vmcnt(2)")
        red2(32)
        k("s_cbranch_vccz L_p2x")
        poll2(32)
        k("s_sub_u32 s5, s5, 1")
        k("s_cbranch_scc1 L_end")
        k("s_waitcnt vmcnt(2)")
        red2(56)
        k("s_cbranch_vccnz L_p2")
        k("L_p2x:")
        k("s_nop 0")
    else:
        k("L_p2:")
        poll2(32)
        k("s_sub_u32 s5, s5, 1")
        k("s_cbranch_scc1 L_end")
        k("s_waitcnt vmcnt(0)")
        red2(32)
        k("s_cbranch_vccnz L_p2")
        k("s_nop 0")
    k.stamp(8)
    if stamps: k("s_mov_b32 s86, s5")
    k(f"""
    v_add_f32_dpp v48, v48, v48 row_ror:2 row_mask:0xf bank_mask:0xf
    s_or_b32 s4, s2, s24
    v_mov_b32 v4, 0
    v_add_f32_dpp v48, v48, v48 row_ror:1 row_mask:0xf bank_mask:0xf
    s_mov_b32 exec_lo, 0x00010001
    s_mov_b32 exec_hi, 0x00010001
    v_cvt_pk_bf16_f32 v48, v48, v48
    global_store_short v7, v48, s[16:17] {outf}
    s_cbranch_scc1 L_fin
    v_mov_b32 v5, s23
    global_store_dword v4, v5, s[18:19]
    L_fin:
    """)
    if stamps:
        k("s_mov_b64 exec, -1")
        k("s_waitcnt vmcnt(0)")
        k.stamp(9)
        k.dump_stamps(18, n=12, vtmp=40)
    k("L_end:")
    k("s_endpgm")
    k(f"""
    L_slow:
    global_store_dwordx4 v22, v[24:27], s[18:19] sc1
    s_branch L_st
    """)
    text = k.finish(140, 96)
    if helper:
        text = add_touch_points(text)
    return text

def parse(spec):
    kw = {}
    for p in spec.split(","):
        if not p: continue
        if "=" in p:
            a, b = p.split("=")
            b = b.replace("+", " ")
            try: b = int(b, 0)
            except ValueError: pass
            kw[a] = b
        else:
            kw[p] = True
    return kw
if __name__ == "__main__":
    names = []
    for spec in sys.argv[1:]:
        nm = "v4_" + spec.replace(",", "_").replace("=", "").replace("+", "") + ".s"
        open(nm, "w").write(gen(**parse(spec)))
        names.append(nm)
    print(" ".join(names))
```

```python
import sys
from kcommon import *
EP_OFF = 0x400
HL_OFF = 0x800
X1_OFF = 0x1000
X2_OFF = 0x40000
NEQ = "bitop3:0x7e"
def gen(stamps=False, W=6, pause=4, bar=1, ldf="nt", x1s="sc1", x2s="", pf="sc1", midpoll=3, spin=0x20000,
        epstep=1, helstep=8, force=None, align=12, pipe2=1, outf="", csleep=0, d1=0, shrink=1):
    k = K(256, 512, 0, stamps=stamps, sbase=64, align=align)
    TM1, TM2 = 0xff, 0x3ff
    W1, WD = 32, 96
    k.stamp(0)
    k(f"""
    s_load_dwordx8 s[8:15], s[0:1], 0
    s_load_dwordx2 s[18:19], s[0:1], 48
    v_readfirstlane_b32 s24, v0
    s_cmp_ge_u32 s2, 224
    s_cbranch_scc1 L_cons
    s_cmpk_lt_u32 s24, 256
    s_cselect_b64 exec, -1, 0
    s_cbranch_execz L_t1
    s_and_b32 s20, s2, 7
    s_lshr_b32 s21, s2, 3
    v_and_b32 v5, 7, v0
    v_bfe_u32 v6, v0, 3, 3
    s_lshr_b32 s25, s24, 7
    s_add_u32 s22, s21, s25
    s_cmp_eq_u32 s22, 28
    s_cselect_b32 s22, 0, s22
    s_and_b32 s26, s24, 64
    s_mul_i32 s3, s20, {128*7168}
    s_lshl_b32 s4, s22, 8
    s_add_u32 s3, s3, s4
    s_lshl_b32 s4, s26, 1
    s_add_u32 s3, s3, s4
    s_addk_i32 s3, 3584
    v_mul_u32_u24 v1, {16*7168}, v6
    v_lshl_add_u32 v1, v5, 4, v1
    v_add_u32 v1, s3, v1
    s_lshl_b32 s35, s20, 8
    v_lshl_add_u32 v3, v6, 5, s35
    s_movk_i32 s6, 14336
    s_cmp_eq_u32 s25, 0
    s_waitcnt lgkmcnt(0)
    s_cselect_b32 s10, s10, s12
    s_cselect_b32 s11, s11, s13
    """)
    k.stamp(1)
    seq = []
    def vm(name, text):
        seq.append(name); k(text)
    def wait_for(name):
        n = len(seq) - 1 - seq.index(name)
        k(f"s_waitcnt vmcnt({n})")
    vm("x0", "global_load_dwordx4 v[8:11], v3, s[8:9]")
    vm("x1", "global_load_dwordx4 v[12:15], v3, s[8:9] offset:16")
    def issue(n):
        if n < 16:
            off = -3584 if n % 2 == 0 else 3584
            vm(n, f"global_load_dwordx4 v[{W1+4*n}:{W1+4*n+3}], v1, s[10:11] offset:{off} {ldf}")
            if n % 2 == 1 and n < 15:
                k("v_add_u32 v1, s6, v1")
        else:
            t = n - 16
            vm(n, f"global_load_dwordx4 v[{WD+4*t}:{WD+4*t+3}], v2, s[14:15] {ldf}")
            if t < 7:
                k("v_add_u32 v2, s7, v2")
    gate = [n - W if n < 16 + pause else 99 for n in range(24)]
    nxt = 0
    while gate[nxt] < 0:
        issue(nxt); nxt += 1
    k(f"""
    s_load_dword s23, s[18:19], 0
    s_lshl_b32 s3, s21, 8
    s_add_u32 s27, s3, s24
    s_lshl_b32 s3, s27, 10
    s_add_u32 s3, s3, s35
    v_bfe_u32 v7, v0, 4, 2
    v_and_b32 v16, 15, v0
    v_lshlrev_b32 v2, 11, v7
    v_lshl_add_u32 v2, v16, 4, v2
    v_add_u32 v2, s3, v2
    s_movk_i32 s7, 8192
    v_and_b32 v17, 1, v0
    v_lshlrev_b32 v17, 4, v17
    s_mov_b32 s4, 0xffff
    v_lshlrev_b32 v17, v17, s4
    v_lshrrev_b32 v18, 1, v5
    v_cmp_eq_u32 s[36:37], 0, v18
    v_cmp_eq_u32 s[38:39], 1, v18
    v_cmp_eq_u32 s[40:41], 2, v18
    v_cmp_eq_u32 vcc, 3, v18
    v_cndmask_b32 v28, 0, v17, s[36:37]
    v_cndmask_b32 v29, 0, v17, s[38:39]
    v_cndmask_b32 v30, 0, v17, s[40:41]
    v_cndmask_b32 v31, 0, v17, vcc
    s_mov_b32 s30, 0x01000100
    s_mov_b32 s31, 0x03020302
    """)
    k(f"""
    s_lshl_b32 s3, s22, 1
    s_add_u32 s3, s3, s25
    s_lshl_b32 s3, s3, 3
    s_add_u32 s3, s3, s20
    s_lshl_b32 s3, s3, 7
    s_add_u32 s3, s3, s26
    s_lshl_b32 s3, s3, 2
    s_addk_i32 s3, {X1_OFF}
    v_and_b32 v19, 16, v0
    v_lshl_add_u32 v20, v5, 5, v19
    v_add_u32 v20, s3, v20
    s_lshl_b32 s3, s21, 12
    s_add_u32 s3, s3, s24
    s_lshl_b32 s3, s3, 1
    s_addk_i32 s3, {X1_OFF + 2048}
    v_lshlrev_b32 v21, 9, v6
    v_lshl_add_u32 v21, v5, 4, v21
    v_add_u32 v21, s3, v21
    s_add_u32 s3, s20, {X2_OFF >> 16}
    s_lshl_b32 s3, s3, 15
    s_add_u32 s3, s3, s27
    s_lshl_b32 s3, s3, 1
    v_bfe_u32 v22, v0, 2, 2
    v_lshlrev_b32 v22, 14, v22
    v_and_b32 v17, 3, v0
    v_lshl_add_u32 v17, v17, 5, v19
    v_add3_u32 v22, v22, v17, s3
    v_lshrrev_b32 v7, 2, v19
    v_lshl_add_u32 v7, v16, 3, v7
    s_lshl_b32 s3, s20, 7
    v_add_u32 v7, s3, v7
    s_getreg_b32 s33, hwreg(HW_REG_XCC_ID, 0, 4)
    s_movk_i32 s29, {hex(0xffff ^ TM1)}
    s_movk_i32 s32, {hex(0xffff ^ TM2)}
    """)
    k.stamp(2)
    wait_for("x1")
    for i in range(16):
        k(f"v_perm_b32 v4, v{8+i//2}, v{8+i//2}, s{30+(i&1)}")
        for d in range(4):
            k(f"v_and_b32 v{16+d}, v4, v{28+d}")
        wait_for(i)
        did = False
        while nxt < 24 and gate[nxt] <= i:
            issue(nxt); nxt += 1; did = True
        if i == epstep:
            vm("ep", f"global_load_dword v128, v7, s[18:19] offset:{EP_OFF}"); did = True
        if i == helstep:
            vm("hel", f"global_load_dword v129, v7, s[18:19] offset:{HL_OFF} {pf}"); did = True
        if not did:
            k("s_nop 0")
        c = "0" if i == 0 else "v[24:27]"
        k(f"v_mfma_f32_16x16x32_bf16 v[24:27], v[16:19], v[{W1+4*i}:{W1+4*i+3}], {c}")
    assert seq.index("hel") < seq.index(15) and seq.index("ep") < seq.index(15)
    k.stamp(3)
    k(f"""
    s_waitcnt lgkmcnt(0)
    s_add_u32 s23, s23, 1
    s_and_b32 s4, s23, 63
    s_addk_i32 s4, 0x60
    v_mov_b32 v23, s4
    v_add_u32 v128, 1, v128
    v_lshl_or_b32 v130, v128, 4, s33
    v_cmp_ne_u32 s[36:37], v130, v129
    """)
    for r in range(4):
        k(f"v_permlane32_swap_b32 v{24+r}, v{16+r}")
    for r in range(4):
        k(f"v_add_f32_dpp v{24+r}, v{16+r}, v{24+r} row_ror:8 row_mask:0xf bank_mask:0xf")
    k("s_mov_b64 exec, 0x00ff00ff")
    for r in range(4):
        k(f"v_and_or_b32 v{24+r}, v{24+r}, s29, v23")
    vm("x1st", f"global_store_dwordx4 v20, v[24:27], s[18:19] {x1s}")
    k("s_mov_b64 exec, -1")
    k.stamp(4)
    if bar: k("s_barrier")
    while nxt < 24:
        issue(nxt); nxt += 1
    k(f"""
    s_mov_b32 s5, {spin}
    v_and_b32 v128, 0xff, v128
    v_add_u32 v128, 0x180, v128
    """)
    wait_for(24 - midpoll)
    if d1: k(f"s_sleep {d1}")
    if stamps: k.stamp(2)
    k(f"""
    L_p1:
    global_load_dwordx4 v[32:35], v21, s[18:19] offset:-2048 {pf}
    global_load_dwordx4 v[36:39], v21, s[18:19] offset:2048 {pf}
    s_sub_u32 s5, s5, 1
    s_cbranch_scc1 L_end
    s_waitcnt vmcnt(0)
    """)
    k.stamp(5)
    k(f"""
    v_permlane32_swap_b32 v32, v34
    v_permlane32_swap_b32 v33, v35
    v_permlane32_swap_b32 v36, v38
    v_permlane32_swap_b32 v37, v39
    v_add_f32 v48, v32, v34
    v_add_f32 v49, v33, v35
    v_add_f32 v50, v36, v38
    v_add_f32 v51, v37, v39
    v_bitop3_b32 v52, v32, v33, v23 {NEQ}
    v_permlane16_swap_b32 v48, v49
    v_bitop3_b32 v53, v34, v35, v23 {NEQ}
    v_permlane16_swap_b32 v50, v51
    v_add_f32 v48, v48, v49
    v_add_f32 v50, v50, v51
    v_bitop3_b32 v54, v36, v37, v23 {NEQ}
    v_add_f32_dpp v48, v48, v48 row_ror:8 row_mask:0xf bank_mask:0xf
    v_add_f32_dpp v50, v50, v50 row_ror:8 row_mask:0xf bank_mask:0xf
    v_cvt_pk_bf16_f32 v48, v48, v50
    v_lshlrev_b32 v49, 16, v48
    v_mul_f32 v50, 0xbfb8aa3b, v49
    v_exp_f32 v50, v50
    v_bitop3_b32 v55, v38, v39, v23 {NEQ}
    v_add_f32 v50, 1.0, v50
    v_rcp_f32 v50, v50
    v_or3_b32 v52, v52, v53, v54
    v_mul_f32 v49, v49, v50
    v_cvt_pk_bf16_f32 v49, v49, v49
    v_and_b32 v48, 0xffff0000, v48
    v_and_b32 v49, 0xffff0000, v49
    v_mul_f32 v49, v49, v48
    v_cvt_pk_bf16_f32 v49, v49, v49
    v_bitop3_b32 v52, v52, v55, s29 bitop3:0x54
    v_cmp_ne_u32 vcc, 0, v52
    """)
    k.stamp(6)
    for t in range(8):
        a = 40 + 4 * (t & 1)
        for d in range(4):
            k(f"v_and_b32_dpp v{a+d}, v49, v{28+d} row_newbcast:{t} row_mask:0xf bank_mask:0xf")
        if t == 0:
            k("s_cbranch_vccnz L_p1")
        if t > 0:
            pa = 40 + 4 * ((t - 1) & 1)
            c = "0" if t == 1 else "v[24:27]"
            k(f"v_mfma_f32_16x16x32_bf16 v[24:27], v[{pa}:{pa+3}], v[{WD+4*(t-1)}:{WD+4*(t-1)+3}], {c}")
    k("s_cmp_lg_u64 s[36:37], 0")
    k(f"v_mfma_f32_16x16x32_bf16 v[24:27], v[44:47], v[{WD+28}:{WD+31}], v[24:27]")
    if stamps:
        k("s_mov_b32 s84, s5")
        k("s_mov_b32 s86, s36")
    if force == "mix":
        k("s_bitcmp1_b32 s21, 0")
    if force == "slow":
        k("s_cmp_eq_u32 s21, s21")
    k(f"""
    s_mov_b32 exec_hi, 0
    s_nop 6
    """)
    for r in range(4):
        k(f"v_and_or_b32 v{24+r}, v{24+r}, s32, v128")
    k(f"""
    s_cbranch_scc1 L_slow
    global_store_dwordx4 v22, v[24:27], s[18:19] {x2s}
    """)
    if stamps:
        k.stamp(7)
        k("s_branch L_fin")
    else:
        k("s_endpgm")
    k("L_slow:")
    k("global_store_dwordx4 v22, v[24:27], s[18:19] sc1")
    if stamps:
        k.stamp(7)
        k("s_branch L_fin")
    else:
        k("L_end:")
        k("s_endpgm")
    k(f"""
    L_cons:
    s_cmpk_ge_u32 s2, 256
    s_cbranch_scc1 L_end
    s_load_dwordx2 s[16:17], s[0:1], 32
    s_and_b32 s20, s2, 7
    s_lshl_b32 s20, s20, 5
    s_and_b32 s21, s2, 24
    s_add_u32 s20, s20, s21
    s_lshr_b32 s24, s24, 6
    s_add_u32 s21, s20, s24
    s_lshl_b32 s22, s21, 2
    s_add_u32 s25, s22, {EP_OFF}
    s_waitcnt lgkmcnt(0)
    s_load_dword s23, s[18:19], s25
    s_load_dword s26, s[18:19], 0
    v_bfe_u32 v7, v0, 4, 2
    s_lshl_b32 s4, s21, 3
    v_lshl_add_u32 v7, v7, 1, s4
    s_lshl_b32 s4, s20, 7
    s_add_u32 s4, s4, s24
    s_lshl_b32 s4, s4, 4
    s_add_u32 s4, s4, {X2_OFF}
    v_and_b32 v3, 63, v0
    v_lshl_add_u32 v130, v3, 7, s4
    v_min_u32 v131, 47, v3
    s_addk_i32 s4, 8192
    v_lshl_add_u32 v131, v131, 7, s4
    v_cmp_gt_u32 vcc, 48, v3
    s_getreg_b32 s33, hwreg(HW_REG_XCC_ID, 0, 4)
    s_movk_i32 s32, {hex(0xffff ^ TM2)}
    v_cndmask_b32 v135, 0, 1.0, vcc
    v_mov_b32 v4, s22
    s_mov_b32 s5, {spin}
    s_waitcnt lgkmcnt(0)
    s_add_u32 s23, s23, 1
    s_add_u32 s26, s26, 1
    s_lshl_b32 s4, s23, 4
    s_or_b32 s33, s33, s4
    v_mov_b32 v5, s33
    global_store_dword v4, v5, s[18:19] offset:{HL_OFF}
    s_and_b32 s4, s23, 255
    s_addk_i32 s4, 0x180
    v_mov_b32 v136, s4
    v_mov_b32 v6, s23
    """)
    def poll2(a, mask=None):
        if mask and shrink: k(f"s_mov_b64 exec, {mask}")
        k(f"""
        global_load_dwordx4 v[{a}:{a+3}], v130, s[18:19] {pf}
        global_load_dwordx4 v[{a+4}:{a+7}], v131, s[18:19] {pf}
        """)
        if mask and shrink: k(f"s_mov_b64 exec, -1")
    def red2(a):
        k(f"""
        v_fma_f32 v48, v{a+4}, v135, v{a}
        v_fma_f32 v50, v{a+6}, v135, v{a+2}
        v_fma_f32 v49, v{a+5}, v135, v{a+1}
        v_fma_f32 v51, v{a+7}, v135, v{a+3}
        v_bitop3_b32 v52, v{a}, v{a+1}, v136 {NEQ}
        v_permlane32_swap_b32 v48, v50
        v_permlane32_swap_b32 v49, v51
        v_add_f32 v48, v48, v50
        v_add_f32 v49, v49, v51
        v_bitop3_b32 v53, v{a+2}, v{a+3}, v136 {NEQ}
        v_bitop3_b32 v54, v{a+4}, v{a+5}, v136 {NEQ}
        v_permlane16_swap_b32 v48, v49
        v_add_f32 v48, v48, v49
        v_bitop3_b32 v55, v{a+6}, v{a+7}, v136 {NEQ}
        v_or3_b32 v52, v52, v53, v54
        v_add_f32_dpp v48, v48, v48 row_ror:8 row_mask:0xf bank_mask:0xf
        v_bitop3_b32 v52, v52, v55, s32 bitop3:0x54
        v_cmp_ne_u32 vcc, 0, v52
        v_add_f32_dpp v48, v48, v48 row_ror:4 row_mask:0xf bank_mask:0xf
        """)
    if pipe2:
        poll2(32)
        k("s_mov_b64 vcc, -1")
        k("L_p2:")
        poll2(56, "vcc")
        k("s_waitcnt vmcnt(2)")
        red2(32)
        k("s_cbranch_vccz L_p2x")
        poll2(32, "vcc")
        k("s_sub_u32 s5, s5, 1")
        k("s_cbranch_scc1 L_end")
        k("s_waitcnt vmcnt(2)")
        red2(56)
        k("s_cbranch_vccnz L_p2")
        k("L_p2x:")
        k("s_nop 0")
    else:
        k("s_mov_b64 vcc, -1")
        k("L_p2:")
        if csleep: k(f"s_sleep {csleep}")
        poll2(32, "vcc")
        k("s_sub_u32 s5, s5, 1")
        k("s_cbranch_scc1 L_end")
        k("s_waitcnt vmcnt(0)")
        red2(32)
        k("s_cbranch_vccnz L_p2")
        k("s_nop 0")
    k.stamp(8)
    k(f"""
    v_add_f32_dpp v48, v48, v48 row_ror:2 row_mask:0xf bank_mask:0xf
    s_cmp_lg_u32 s21, 0
    v_mov_b32 v5, s26
    v_add_f32_dpp v48, v48, v48 row_ror:1 row_mask:0xf bank_mask:0xf
    s_mov_b32 exec_lo, 0x00010001
    s_mov_b32 exec_hi, 0x00010001
    v_cvt_pk_bf16_f32 v48, v48, v48
    global_store_short v7, v48, s[16:17] {outf}
    global_store_dword v4, v6, s[18:19] offset:{EP_OFF}
    s_cbranch_scc1 L_fin
    global_store_dword v4, v5, s[18:19]
    L_fin:
    """)
    if stamps:
        k("s_mov_b64 exec, -1")
        k("s_waitcnt vmcnt(0)")
        k.stamp(9)
        k.dump_stamps(18, n=12, vtmp=40)
        k("L_end:")
    text = k.finish(140, 96)
    return add_touch_points(text, limit="L_cons")

from gen4 import parse
if __name__ == "__main__":
    names = []
    for spec in sys.argv[1:]:
        nm = "v6_" + spec.replace(",", "_").replace("=", "").replace("+", "") + ".s"
        open(nm, "w").write(gen(**parse(spec)))
        names.append(nm)
    print(" ".join(names))
```

```python
import sys
from kcommon import *
EP_OFF = 0x400
HL_OFF = 0x800
X1_OFF = 0x1000
X2_OFF = 0x40000
NEQ = "bitop3:0x7e"
def gen(stamps=False, W=6, pause=4, bar=1, ldf="nt", x1s="sc1", x2s="", pf="sc1", midpoll=3, spin=0x20000,
        epstep=1, helstep=8, force=None, align=12, pipe2=1, outf="", csleep=0, d1=0, shrink=1, lay='lds', probe=None):
    k = K(256, 512, 1024 if lay == "lds" else 0, stamps=stamps, sbase=64, align=align)
    TM1, TM2 = 0xff, 0x3ff
    W1, WD = 32, 96
    k.stamp(0)
    if probe is not None:
        k("s_memrealtime s[90:91]")
    k(f"""
    s_load_dwordx8 s[8:15], s[0:1], 0
    s_load_dwordx2 s[18:19], s[0:1], 48
    v_readfirstlane_b32 s24, v0
    s_cmp_ge_u32 s2, 224
    s_cbranch_scc1 L_cons
    s_cmpk_lt_u32 s24, 256
    s_cselect_b64 exec, -1, 0
    s_cbranch_execz L_t1
    s_and_b32 s20, s2, 7
    s_lshr_b32 s21, s2, 3
    v_and_b32 v5, 7, v0
    v_bfe_u32 v6, v0, 3, 3
    s_lshr_b32 s25, s24, 7
    s_add_u32 s22, s21, s25
    s_cmp_eq_u32 s22, 28
    s_cselect_b32 s22, 0, s22
    s_and_b32 s26, s24, 64
    s_mul_i32 s3, s20, {128*7168}
    s_lshl_b32 s4, s22, 8
    s_add_u32 s3, s3, s4
    s_lshl_b32 s4, s26, 1
    s_add_u32 s3, s3, s4
    s_addk_i32 s3, 3584
    v_mul_u32_u24 v1, {16*7168}, v6
    v_lshl_add_u32 v1, v5, 4, v1
    v_add_u32 v1, s3, v1
    s_lshl_b32 s35, s20, 8
    v_lshl_add_u32 v3, v6, 5, s35
    s_movk_i32 s6, 14336
    s_cmp_eq_u32 s25, 0
    s_waitcnt lgkmcnt(0)
    s_cselect_b32 s10, s10, s12
    s_cselect_b32 s11, s11, s13
    """)
    k.stamp(1)
    seq = []
    def vm(name, text):
        seq.append(name); k(text)
    def wait_for(name):
        n = len(seq) - 1 - seq.index(name)
        k(f"s_waitcnt vmcnt({n})")
    vm("x0", "global_load_dwordx4 v[8:11], v3, s[8:9]")
    vm("x1", "global_load_dwordx4 v[12:15], v3, s[8:9] offset:16")
    def issue(n):
        if n < 16:
            off = -3584 if n % 2 == 0 else 3584
            vm(n, f"global_load_dwordx4 v[{W1+4*n}:{W1+4*n+3}], v1, s[10:11] offset:{off} {ldf}")
            if n % 2 == 1 and n < 15:
                k("v_add_u32 v1, s6, v1")
        else:
            t = n - 16
            vm(n, f"global_load_dwordx4 v[{WD+4*t}:{WD+4*t+3}], v2, s[14:15] {ldf}")
            if t < 7:
                k("v_add_u32 v2, s7, v2")
    gate = [n - W if n < 16 + pause else 99 for n in range(24)]
    nxt = 0
    while gate[nxt] < 0:
        issue(nxt); nxt += 1
    k(f"""
    s_load_dword s23, s[18:19], 0
    s_lshl_b32 s3, s21, 8
    s_add_u32 s27, s3, s24
    s_lshl_b32 s3, s27, 10
    s_add_u32 s3, s3, s35
    v_bfe_u32 v7, v0, 4, 2
    v_and_b32 v16, 15, v0
    v_lshlrev_b32 v2, 11, v7
    v_lshl_add_u32 v2, v16, 4, v2
    v_add_u32 v2, s3, v2
    s_movk_i32 s7, 8192
    v_and_b32 v17, 1, v0
    v_lshlrev_b32 v17, 4, v17
    s_mov_b32 s4, 0xffff
    v_lshlrev_b32 v17, v17, s4
    v_lshrrev_b32 v18, 1, v5
    v_cmp_eq_u32 s[36:37], 0, v18
    v_cmp_eq_u32 s[38:39], 1, v18
    v_cmp_eq_u32 s[40:41], 2, v18
    v_cmp_eq_u32 vcc, 3, v18
    v_cndmask_b32 v28, 0, v17, s[36:37]
    v_cndmask_b32 v29, 0, v17, s[38:39]
    v_cndmask_b32 v30, 0, v17, s[40:41]
    v_cndmask_b32 v31, 0, v17, vcc
    s_mov_b32 s30, 0x01000100
    s_mov_b32 s31, 0x03020302
    """)
    k(f"""
    s_lshl_b32 s3, s22, 1
    s_add_u32 s3, s3, s25
    s_lshl_b32 s3, s3, 3
    s_add_u32 s3, s3, s20
    s_lshl_b32 s3, s3, 7
    s_add_u32 s3, s3, s26
    s_lshl_b32 s3, s3, 2
    s_addk_i32 s3, {X1_OFF}
    v_and_b32 v19, 16, v0
    v_lshl_add_u32 v20, v5, 5, v19
    v_add_u32 v20, s3, v20
    s_lshl_b32 s3, s21, 12
    s_add_u32 s3, s3, s24
    s_lshl_b32 s3, s3, 1
    s_addk_i32 s3, {X1_OFF + 2048}
    v_lshlrev_b32 v21, 9, v6
    v_lshl_add_u32 v21, v5, 4, v21
    v_add_u32 v21, s3, v21
    """)
    if lay == "sc":
        k(f"""
        s_add_u32 s3, s20, {X2_OFF >> 16}
        s_lshl_b32 s3, s3, 16
        s_lshr_b32 s4, s27, 2
        s_add_u32 s3, s3, s4
        v_lshlrev_b32 v22, 12, v16
        v_lshl_add_u32 v22, v19, 7, v22
        v_add_u32 v22, s3, v22
        """)
    else:
        k(f"""
        s_add_u32 s3, s20, {X2_OFF >> 16}
        s_lshl_b32 s3, s3, 15
        s_add_u32 s3, s3, s27
        s_lshl_b32 s3, s3, 1
        v_bfe_u32 v22, v0, 2, 2
        v_lshlrev_b32 v22, 14, v22
        v_and_b32 v17, 3, v0
        v_lshl_add_u32 v17, v17, 5, v19
        v_add3_u32 v22, v22, v17, s3
        """)
    if lay == "lds":
        k("""
        v_and_b32 v16, 12, v16
        v_mov_b32 v19, 0
        """)
    k(f"""
    v_lshrrev_b32 v7, 2, v19
    v_lshl_add_u32 v7, v16, 3, v7
    s_lshl_b32 s3, s20, 7
    v_add_u32 v7, s3, v7
    s_getreg_b32 s33, hwreg(HW_REG_XCC_ID, 0, 4)
    s_movk_i32 s29, {hex(0xffff ^ TM1)}
    s_movk_i32 s32, {hex(0xffff ^ TM2)}
    """)
    k.stamp(2)
    wait_for("x1")
    for i in range(16):
        k(f"v_perm_b32 v4, v{8+i//2}, v{8+i//2}, s{30+(i&1)}")
        for d in range(4):
            k(f"v_and_b32 v{16+d}, v4, v{28+d}")
        wait_for(i)
        did = False
        while nxt < 24 and gate[nxt] <= i:
            issue(nxt); nxt += 1; did = True
        if i == epstep:
            vm("ep", f"global_load_dword v128, v7, s[18:19] offset:{EP_OFF}"); did = True
        if i == helstep:
            vm("hel", f"global_load_dword v129, v7, s[18:19] offset:{HL_OFF} {pf}"); did = True
        if not did:
            k("s_nop 0")
        c = "0" if i == 0 else "v[24:27]"
        k(f"v_mfma_f32_16x16x32_bf16 v[24:27], v[16:19], v[{W1+4*i}:{W1+4*i+3}], {c}")
    assert seq.index("hel") < seq.index(15) and seq.index("ep") < seq.index(15)
    k.stamp(3)
    k(f"""
    s_waitcnt lgkmcnt(0)
    s_add_u32 s23, s23, 1
    s_and_b32 s4, s23, 63
    s_addk_i32 s4, 0x60
    v_mov_b32 v23, s4
    v_add_u32 v128, 1, v128
    v_lshl_or_b32 v130, v128, 4, s33
    v_cmp_ne_u32 s[36:37], v130, v129
    """)
    for r in range(4):
        k(f"v_permlane32_swap_b32 v{24+r}, v{16+r}")
    for r in range(4):
        k(f"v_add_f32_dpp v{24+r}, v{16+r}, v{24+r} row_ror:8 row_mask:0xf bank_mask:0xf")
    k("s_mov_b64 exec, 0x00ff00ff")
    for r in range(4):
        k(f"v_and_or_b32 v{24+r}, v{24+r}, s29, v23")
    vm("x1st", f"global_store_dwordx4 v20, v[24:27], s[18:19] {x1s}")
    k("s_mov_b64 exec, -1")
    if probe is not None:
        k("""
        v_mov_b32 v132, s90
        s_lshl_b32 s4, s2, 2
        v_mov_b32 v133, s4
        """)
        vm("pst", "global_store_dword v133, v132, s[18:19] offset:3072 sc1")
    k.stamp(4)
    if bar: k("s_barrier")
    while nxt < 24:
        issue(nxt); nxt += 1
    k(f"""
    s_mov_b32 s5, {spin}
    v_and_b32 v128, 0xff, v128
    v_add_u32 v128, 0x180, v128
    """)
    wait_for(24 - midpoll)
    if d1: k(f"s_sleep {d1}")
    if stamps: k.stamp(2)
    k(f"""
    L_p1:
    global_load_dwordx4 v[32:35], v21, s[18:19] offset:-2048 {pf}
    global_load_dwordx4 v[36:39], v21, s[18:19] offset:2048 {pf}
    s_sub_u32 s5, s5, 1
    s_cbranch_scc1 L_end
    s_waitcnt vmcnt(0)
    """)
    k.stamp(5)
    k(f"""
    v_permlane32_swap_b32 v32, v34
    v_permlane32_swap_b32 v33, v35
    v_permlane32_swap_b32 v36, v38
    v_permlane32_swap_b32 v37, v39
    v_add_f32 v48, v32, v34
    v_add_f32 v49, v33, v35
    v_add_f32 v50, v36, v38
    v_add_f32 v51, v37, v39
    v_bitop3_b32 v52, v32, v33, v23 {NEQ}
    v_permlane16_swap_b32 v48, v49
    v_bitop3_b32 v53, v34, v35, v23 {NEQ}
    v_permlane16_swap_b32 v50, v51
    v_add_f32 v48, v48, v49
    v_add_f32 v50, v50, v51
    v_bitop3_b32 v54, v36, v37, v23 {NEQ}
    v_add_f32_dpp v48, v48, v48 row_ror:8 row_mask:0xf bank_mask:0xf
    v_add_f32_dpp v50, v50, v50 row_ror:8 row_mask:0xf bank_mask:0xf
    v_cvt_pk_bf16_f32 v48, v48, v50
    v_lshlrev_b32 v49, 16, v48
    v_mul_f32 v50, 0xbfb8aa3b, v49
    v_exp_f32 v50, v50
    v_bitop3_b32 v55, v38, v39, v23 {NEQ}
    v_add_f32 v50, 1.0, v50
    v_rcp_f32 v50, v50
    v_or3_b32 v52, v52, v53, v54
    v_mul_f32 v49, v49, v50
    v_cvt_pk_bf16_f32 v49, v49, v49
    v_and_b32 v48, 0xffff0000, v48
    v_and_b32 v49, 0xffff0000, v49
    v_mul_f32 v49, v49, v48
    v_cvt_pk_bf16_f32 v49, v49, v49
    v_bitop3_b32 v52, v52, v55, s29 bitop3:0x54
    v_cmp_ne_u32 vcc, 0, v52
    """)
    k.stamp(6)
    for t in range(8):
        a = 40 + 4 * (t & 1)
        for d in range(4):
            k(f"v_and_b32_dpp v{a+d}, v49, v{28+d} row_newbcast:{t} row_mask:0xf bank_mask:0xf")
        if t == 0:
            k("s_cbranch_vccnz L_p1")
        if t > 0:
            pa = 40 + 4 * ((t - 1) & 1)
            c = "0" if t == 1 else "v[24:27]"
            k(f"v_mfma_f32_16x16x32_bf16 v[24:27], v[{pa}:{pa+3}], v[{WD+4*(t-1)}:{WD+4*(t-1)+3}], {c}")
    k("s_cmp_lg_u64 s[36:37], 0")
    k(f"v_mfma_f32_16x16x32_bf16 v[24:27], v[44:47], v[{WD+28}:{WD+31}], v[24:27]")
    if stamps:
        k("s_mov_b32 s84, s5")
        k("s_mov_b32 s86, s36")
    if force == "mix":
        k("s_bitcmp1_b32 s21, 0")
    if force == "slow":
        k("s_cmp_eq_u32 s21, s21")
    k(f"""
    s_mov_b32 exec_hi, 0
    s_nop 6
    """)
    for r in range(4):
        k(f"v_and_or_b32 v{24+r}, v{24+r}, s32, v128")
    k(f"""
    s_cbranch_scc1 L_slow
    global_store_dwordx4 v22, v[24:27], s[18:19] {x2s}
    """)
    if stamps:
        k.stamp(7)
        k("s_branch L_fin")
    else:
        k("s_endpgm")
    k("L_slow:")
    k("global_store_dwordx4 v22, v[24:27], s[18:19] sc1")
    if stamps:
        k.stamp(7)
        k("s_branch L_fin")
    else:
        k("L_end:")
        k("s_endpgm")
    k(f"""
    L_cons:
    s_cmpk_ge_u32 s2, 256
    s_cbranch_scc1 L_end
    s_load_dwordx2 s[16:17], s[0:1], 32
    s_and_b32 s20, s2, 7
    s_lshl_b32 s20, s20, 5
    s_and_b32 s21, s2, 24
    s_add_u32 s20, s20, s21
    s_lshr_b32 s24, s24, 6
    s_add_u32 s21, s20, s24
    s_lshl_b32 s22, {"s20" if lay == "lds" else "s21"}, 2
    s_add_u32 s25, s22, {EP_OFF}
    s_waitcnt lgkmcnt(0)
    s_load_dword s23, s[18:19], s25
    s_load_dword s26, s[18:19], 0
    v_bfe_u32 v7, v0, 4, 2
    s_lshl_b32 s4, s21, 3
    v_lshl_add_u32 v7, v7, 1, s4
    """)
    if lay == "line":
        k(f"""
        s_lshl_b32 s4, s20, 7
        s_add_u32 s4, s4, s24
        s_lshl_b32 s4, s4, 4
        s_add_u32 s4, s4, {X2_OFF}
        v_and_b32 v3, 63, v0
        v_lshl_add_u32 v130, v3, 7, s4
        v_min_u32 v131, 47, v3
        s_addk_i32 s4, 8192
        v_lshl_add_u32 v131, v131, 7, s4
        """)
    else:
        if lay == "sc":
            k("s_lshl_b32 s4, s21, 11")
        else:
            k("""
            s_lshl_b32 s4, s20, 11
            s_mul_i32 s3, s24, 1792
            s_add_u32 s4, s4, s3
            """)
        k(f"""
        s_add_u32 s4, s4, {X2_OFF}
        v_and_b32 v3, 63, v0
        v_lshl_add_u32 v130, v3, 4, s4
        v_min_u32 v131, 47, v3
        s_addk_i32 s4, 1024
        v_lshl_add_u32 v131, v131, 4, s4
        """)
    if lay == "lds":
        k("""
        v_and_b32 v8, 7, v0
        v_bfe_u32 v9, v0, 4, 2
        v_lshl_add_u32 v8, v8, 2, v9
        s_lshl_b32 s3, s24, 2
        v_lshl_add_u32 v8, v8, 5, s3
        v_and_b32 v7, 31, v0
        v_lshlrev_b32 v9, 5, v7
        s_lshl_b32 s3, s20, 3
        v_lshl_add_u32 v7, v7, 1, s3
        """)
    k(f"""
    v_cmp_gt_u32 vcc, 48, v3
    s_getreg_b32 s33, hwreg(HW_REG_XCC_ID, 0, 4)
    s_movk_i32 s32, {hex(0xffff ^ TM2)}
    v_cndmask_b32 v135, 0, 1.0, vcc
    v_mov_b32 v4, s22
    s_mov_b32 s5, {spin}
    s_waitcnt lgkmcnt(0)
    s_add_u32 s23, s23, 1
    s_add_u32 s26, s26, 1
    s_lshl_b32 s4, s23, 4
    s_or_b32 s33, s33, s4
    v_mov_b32 v5, s33
    global_store_dword v4, v5, s[18:19] offset:{HL_OFF}
    s_and_b32 s4, s23, 255
    s_addk_i32 s4, 0x180
    v_mov_b32 v136, s4
    v_mov_b32 v6, s23
    """)
    def poll2(a, mask=None):
        if mask and shrink: k(f"s_mov_b64 exec, {mask}")
        k(f"""
        global_load_dwordx4 v[{a}:{a+3}], v130, s[18:19] {pf}
        global_load_dwordx4 v[{a+4}:{a+7}], v131, s[18:19] {pf}
        """)
        if mask and shrink: k(f"s_mov_b64 exec, -1")
    def red2(a):
        k(f"""
        v_fma_f32 v48, v{a+4}, v135, v{a}
        v_fma_f32 v50, v{a+6}, v135, v{a+2}
        v_fma_f32 v49, v{a+5}, v135, v{a+1}
        v_fma_f32 v51, v{a+7}, v135, v{a+3}
        v_bitop3_b32 v52, v{a}, v{a+1}, v136 {NEQ}
        v_permlane32_swap_b32 v48, v50
        v_permlane32_swap_b32 v49, v51
        v_add_f32 v48, v48, v50
        v_add_f32 v49, v49, v51
        v_bitop3_b32 v53, v{a+2}, v{a+3}, v136 {NEQ}
        v_bitop3_b32 v54, v{a+4}, v{a+5}, v136 {NEQ}
        v_permlane16_swap_b32 v48, v49
        v_add_f32 v48, v48, v49
        v_bitop3_b32 v55, v{a+6}, v{a+7}, v136 {NEQ}
        v_or3_b32 v52, v52, v53, v54
        v_add_f32_dpp v48, v48, v48 row_ror:8 row_mask:0xf bank_mask:0xf
        v_bitop3_b32 v52, v52, v55, s32 bitop3:0x54
        v_cmp_ne_u32 vcc, 0, v52
        """)
        if lay == "lds":
            k("ds_write_b32 v8, v48")
        else:
            k("v_add_f32_dpp v48, v48, v48 row_ror:4 row_mask:0xf bank_mask:0xf")
    if pipe2:
        poll2(32)
        k("s_mov_b64 vcc, -1")
        k("L_p2:")
        poll2(56, "vcc")
        k("s_waitcnt vmcnt(2)")
        red2(32)
        k("s_cbranch_vccz L_p2x")
        poll2(32, "vcc")
        k("s_sub_u32 s5, s5, 1")
        k("s_cbranch_scc1 L_end")
        k("s_waitcnt vmcnt(2)")
        red2(56)
        k("s_cbranch_vccnz L_p2")
        k("L_p2x:")
        k("s_nop 0")
    else:
        k("s_mov_b64 vcc, -1")
        k("L_p2:")
        if csleep: k(f"s_sleep {csleep}")
        poll2(32, "vcc")
        k("s_sub_u32 s5, s5, 1")
        k("s_cbranch_scc1 L_end")
        k("s_waitcnt vmcnt(0)")
        red2(32)
        k("s_cbranch_vccnz L_p2")
        k("s_nop 0")
    k.stamp(8)
    if lay == "lds":
        k(f"""
        s_cmp_lg_u32 s24, 0
        s_waitcnt lgkmcnt(0)
        s_barrier
        s_cbranch_scc1 L_fin
        ds_read_b128 v[64:67], v9
        ds_read_b128 v[68:71], v9 offset:16
        s_mov_b32 exec_hi, 0
        s_cmp_lg_u32 s21, 0
        v_mov_b32 v5, s26
        s_waitcnt lgkmcnt(1)
        v_add_f32 v64, v64, v65
        v_add_f32 v66, v66, v67
        s_waitcnt lgkmcnt(0)
        v_add_f32 v68, v68, v69
        v_add_f32 v70, v70, v71
        v_add_f32 v64, v64, v66
        v_add_f32 v68, v68, v70
        v_add_f32 v64, v64, v68
        v_cvt_pk_bf16_f32 v48, v64, v64
        global_store_short v7, v48, s[16:17] {outf}
        global_store_dword v4, v6, s[18:19] offset:{EP_OFF}
        s_cbranch_scc1 L_fin
        global_store_dword v4, v5, s[18:19]
        """)
        if probe is not None:
            pa, pb = probe // 16, probe % 16
            k(f"""
            global_load_dwordx4 v[64:67], v4, s[18:19] offset:3072 sc1
            global_load_dwordx4 v[68:71], v4, s[18:19] offset:3088 sc1
            s_memrealtime s[92:93]
            s_waitcnt vmcnt(0) lgkmcnt(0)
            v_readfirstlane_b32 s6, v{64+pa}
            v_readfirstlane_b32 s7, v{64+pb}
            s_sub_u32 s4, s7, s6
            s_add_u32 s4, s4, 50
            s_max_i32 s4, s4, 0
            s_min_u32 s4, s4, 400
            s_mul_i32 s4, s4, 20
            L_spin:
            s_sleep 1
            s_memrealtime s[6:7]
            s_waitcnt lgkmcnt(0)
            s_sub_u32 s5, s6, s92
            s_cmp_lt_u32 s5, s4
            s_cbranch_scc1 L_spin
            """)
        k("L_fin:")
    else:
      k(f"""
    v_add_f32_dpp v48, v48, v48 row_ror:2 row_mask:0xf bank_mask:0xf
    s_cmp_lg_u32 s21, 0
    v_mov_b32 v5, s26
    v_add_f32_dpp v48, v48, v48 row_ror:1 row_mask:0xf bank_mask:0xf
    s_mov_b32 exec_lo, 0x00010001
    s_mov_b32 exec_hi, 0x00010001
    v_cvt_pk_bf16_f32 v48, v48, v48
    global_store_short v7, v48, s[16:17] {outf}
    global_store_dword v4, v6, s[18:19] offset:{EP_OFF}
    s_cbranch_scc1 L_fin
    global_store_dword v4, v5, s[18:19]
    L_fin:
    """)
    if stamps:
        k("s_mov_b64 exec, -1")
        k("s_waitcnt vmcnt(0)")
        k.stamp(9)
        k.dump_stamps(18, n=12, vtmp=40)
        k("L_end:")
    text = k.finish(140, 96)
    return add_touch_points(text, limit="L_cons")

from gen4 import parse
if __name__ == "__main__":
    names = []
    for spec in sys.argv[1:]:
        nm = "v6_" + spec.replace(",", "_").replace("=", "").replace("+", "") + ".s"
        open(nm, "w").write(gen(**parse(spec)))
        names.append(nm)
    print(" ".join(names))
```

```python
import sys
from kcommon import *
EP_OFF = 0x400
HL_OFF = 0x800
X1_OFF = 0x1000
X2_OFF = 0x40000
NEQ = "bitop3:0x7e"
def gen(stamps=False, W=6, pause=4, bar=1, ldf="nt", x1s="sc1", x2s="", pf="sc1", midpoll=3, spin=0x20000,
        epstep=1, helstep=8, force=None, align=12, pipe2=1, outf="", csleep=0, d1=0, shrink=1, lay='lds', probe=None, iprobe=None, amp=0, helper=1, am='max'):
    k = K(256, 512, 1024 if lay == "lds" else 0, stamps=stamps, sbase=64, align=align)
    TM1, TM2 = 0xff, 0x3ff
    W1, WD = 32, 96
    k.stamp(0)
    if probe is not None or amp:
        k("s_memrealtime s[90:91]")
    k(f"""
    s_load_dwordx8 s[8:15], s[0:1], 0
    s_load_dwordx2 s[18:19], s[0:1], 48
    v_readfirstlane_b32 s24, v0
    s_cmp_ge_u32 s2, 224
    s_cbranch_scc1 L_cons
    s_cmpk_lt_u32 s24, 256
    s_cselect_b64 exec, -1, 0
    s_cbranch_execz {'L_t1' if helper else 'L_end'}
    s_and_b32 s20, s2, 7
    s_lshr_b32 s21, s2, 3
    v_and_b32 v5, 7, v0
    v_bfe_u32 v6, v0, 3, 3
    s_lshr_b32 s25, s24, 7
    s_add_u32 s22, s21, s25
    s_cmp_eq_u32 s22, 28
    s_cselect_b32 s22, 0, s22
    s_and_b32 s26, s24, 64
    s_mul_i32 s3, s20, {128*7168}
    s_lshl_b32 s4, s22, 8
    s_add_u32 s3, s3, s4
    s_lshl_b32 s4, s26, 1
    s_add_u32 s3, s3, s4
    s_addk_i32 s3, 3584
    v_mul_u32_u24 v1, {16*7168}, v6
    v_lshl_add_u32 v1, v5, 4, v1
    v_add_u32 v1, s3, v1
    s_lshl_b32 s35, s20, 8
    v_lshl_add_u32 v3, v6, 5, s35
    s_movk_i32 s6, 14336
    s_cmp_eq_u32 s25, 0
    s_waitcnt lgkmcnt(0)
    s_cselect_b32 s10, s10, s12
    s_cselect_b32 s11, s11, s13
    """)
    k.stamp(1)
    seq = []
    def vm(name, text):
        seq.append(name); k(text)
    def wait_for(name):
        n = len(seq) - 1 - seq.index(name)
        k(f"s_waitcnt vmcnt({n})")
    vm("x0", "global_load_dwordx4 v[8:11], v3, s[8:9]")
    vm("x1", "global_load_dwordx4 v[12:15], v3, s[8:9] offset:16")
    def issue(n):
        if n < 16:
            off = -3584 if n % 2 == 0 else 3584
            vm(n, f"global_load_dwordx4 v[{W1+4*n}:{W1+4*n+3}], v1, s[10:11] offset:{off} {ldf}")
            if n % 2 == 1 and n < 15:
                k("v_add_u32 v1, s6, v1")
        else:
            t = n - 16
            vm(n, f"global_load_dwordx4 v[{WD+4*t}:{WD+4*t+3}], v2, s[14:15] {ldf}")
            if t < 7:
                k("v_add_u32 v2, s7, v2")
    gate = [n - W if n < 16 + pause else 99 for n in range(24)]
    nxt = 0
    while gate[nxt] < 0:
        issue(nxt); nxt += 1
    k(f"""
    s_load_dword s23, s[18:19], 0
    s_lshl_b32 s3, s21, 8
    s_add_u32 s27, s3, s24
    s_lshl_b32 s3, s27, 10
    s_add_u32 s3, s3, s35
    v_bfe_u32 v7, v0, 4, 2
    v_and_b32 v16, 15, v0
    v_lshlrev_b32 v2, 11, v7
    v_lshl_add_u32 v2, v16, 4, v2
    v_add_u32 v2, s3, v2
    s_movk_i32 s7, 8192
    v_and_b32 v17, 1, v0
    v_lshlrev_b32 v17, 4, v17
    s_mov_b32 s4, 0xffff
    v_lshlrev_b32 v17, v17, s4
    v_lshrrev_b32 v18, 1, v5
    v_cmp_eq_u32 s[36:37], 0, v18
    v_cmp_eq_u32 s[38:39], 1, v18
    v_cmp_eq_u32 s[40:41], 2, v18
    v_cmp_eq_u32 vcc, 3, v18
    v_cndmask_b32 v28, 0, v17, s[36:37]
    v_cndmask_b32 v29, 0, v17, s[38:39]
    v_cndmask_b32 v30, 0, v17, s[40:41]
    v_cndmask_b32 v31, 0, v17, vcc
    s_mov_b32 s30, 0x01000100
    s_mov_b32 s31, 0x03020302
    """)
    k(f"""
    s_lshl_b32 s3, s22, 1
    s_add_u32 s3, s3, s25
    s_lshl_b32 s3, s3, 3
    s_add_u32 s3, s3, s20
    s_lshl_b32 s3, s3, 7
    s_add_u32 s3, s3, s26
    s_lshl_b32 s3, s3, 2
    s_addk_i32 s3, {X1_OFF}
    v_and_b32 v19, 16, v0
    v_lshl_add_u32 v20, v5, 5, v19
    v_add_u32 v20, s3, v20
    s_lshl_b32 s3, s21, 12
    s_add_u32 s3, s3, s24
    s_lshl_b32 s3, s3, 1
    s_addk_i32 s3, {X1_OFF + 2048}
    v_lshlrev_b32 v21, 9, v6
    v_lshl_add_u32 v21, v5, 4, v21
    v_add_u32 v21, s3, v21
    """)
    if lay == "sc":
        k(f"""
        s_add_u32 s3, s20, {X2_OFF >> 16}
        s_lshl_b32 s3, s3, 16
        s_lshr_b32 s4, s27, 2
        s_add_u32 s3, s3, s4
        v_lshlrev_b32 v22, 12, v16
        v_lshl_add_u32 v22, v19, 7, v22
        v_add_u32 v22, s3, v22
        """)
    else:
        k(f"""
        s_add_u32 s3, s20, {X2_OFF >> 16}
        s_lshl_b32 s3, s3, 15
        s_add_u32 s3, s3, s27
        s_lshl_b32 s3, s3, 1
        v_bfe_u32 v22, v0, 2, 2
        v_lshlrev_b32 v22, 14, v22
        v_and_b32 v17, 3, v0
        v_lshl_add_u32 v17, v17, 5, v19
        v_add3_u32 v22, v22, v17, s3
        """)
    if lay == "lds":
        k("""
        v_and_b32 v16, 12, v16
        v_mov_b32 v19, 0
        """)
    k(f"""
    v_lshrrev_b32 v7, 2, v19
    v_lshl_add_u32 v7, v16, 3, v7
    s_lshl_b32 s3, s20, 7
    v_add_u32 v7, s3, v7
    s_getreg_b32 s33, hwreg(HW_REG_XCC_ID, 0, 4)
    s_movk_i32 s29, {hex(0xffff ^ TM1)}
    s_movk_i32 s32, {hex(0xffff ^ TM2)}
    """)
    k.stamp(2)
    wait_for("x1")
    for i in range(16):
        k(f"v_perm_b32 v4, v{8+i//2}, v{8+i//2}, s{30+(i&1)}")
        for d in range(4):
            k(f"v_and_b32 v{16+d}, v4, v{28+d}")
        wait_for(i)
        did = False
        while nxt < 24 and gate[nxt] <= i:
            issue(nxt); nxt += 1; did = True
        if i == epstep:
            vm("ep", f"global_load_dword v128, v7, s[18:19] offset:{EP_OFF}"); did = True
        if i == helstep:
            vm("hel", f"global_load_dword v129, v7, s[18:19] offset:{HL_OFF} {pf}"); did = True
        if not did:
            k("s_nop 0")
        c = "0" if i == 0 else "v[24:27]"
        k(f"v_mfma_f32_16x16x32_bf16 v[24:27], v[16:19], v[{W1+4*i}:{W1+4*i+3}], {c}")
    assert seq.index("hel") < seq.index(15) and seq.index("ep") < seq.index(15)
    k.stamp(3)
    k(f"""
    s_waitcnt lgkmcnt(0)
    s_add_u32 s23, s23, 1
    s_and_b32 s4, s23, 63
    s_addk_i32 s4, 0x60
    v_mov_b32 v23, s4
    v_add_u32 v128, 1, v128
    v_lshl_or_b32 v130, v128, 4, s33
    v_cmp_ne_u32 s[36:37], v130, v129
    """)
    for r in range(4):
        k(f"v_permlane32_swap_b32 v{24+r}, v{16+r}")
    for r in range(4):
        k(f"v_add_f32_dpp v{24+r}, v{16+r}, v{24+r} row_ror:8 row_mask:0xf bank_mask:0xf")
    k("s_mov_b64 exec, 0x00ff00ff")
    for r in range(4):
        k(f"v_and_or_b32 v{24+r}, v{24+r}, s29, v23")
    vm("x1st", f"global_store_dwordx4 v20, v[24:27], s[18:19] {x1s}")
    k("s_mov_b64 exec, -1")
    if probe is not None:
        k("""
        v_mov_b32 v132, s90
        s_lshl_b32 s4, s2, 2
        v_mov_b32 v133, s4
        """)
        vm("pst", "global_store_dword v133, v132, s[18:19] offset:3072 sc1")
    k.stamp(4)
    if bar: k("s_barrier")
    while nxt < 24:
        issue(nxt); nxt += 1
    k(f"""
    s_mov_b32 s5, {spin}
    v_and_b32 v128, 0xff, v128
    v_add_u32 v128, 0x180, v128
    """)
    wait_for(24 - midpoll)
    if d1: k(f"s_sleep {d1}")
    if stamps: k.stamp(2)
    k(f"""
    L_p1:
    global_load_dwordx4 v[32:35], v21, s[18:19] offset:-2048 {pf}
    global_load_dwordx4 v[36:39], v21, s[18:19] offset:2048 {pf}
    s_sub_u32 s5, s5, 1
    s_cbranch_scc1 L_end
    s_waitcnt vmcnt(0)
    """)
    k.stamp(5)
    k(f"""
    v_permlane32_swap_b32 v32, v34
    v_permlane32_swap_b32 v33, v35
    v_permlane32_swap_b32 v36, v38
    v_permlane32_swap_b32 v37, v39
    v_add_f32 v48, v32, v34
    v_add_f32 v49, v33, v35
    v_add_f32 v50, v36, v38
    v_add_f32 v51, v37, v39
    v_bitop3_b32 v52, v32, v33, v23 {NEQ}
    v_permlane16_swap_b32 v48, v49
    v_bitop3_b32 v53, v34, v35, v23 {NEQ}
    v_permlane16_swap_b32 v50, v51
    v_add_f32 v48, v48, v49
    v_add_f32 v50, v50, v51
    v_bitop3_b32 v54, v36, v37, v23 {NEQ}
    v_add_f32_dpp v48, v48, v48 row_ror:8 row_mask:0xf bank_mask:0xf
    v_add_f32_dpp v50, v50, v50 row_ror:8 row_mask:0xf bank_mask:0xf
    v_cvt_pk_bf16_f32 v48, v48, v50
    v_lshlrev_b32 v49, 16, v48
    v_mul_f32 v50, 0xbfb8aa3b, v49
    v_exp_f32 v50, v50
    v_bitop3_b32 v55, v38, v39, v23 {NEQ}
    v_add_f32 v50, 1.0, v50
    v_rcp_f32 v50, v50
    v_or3_b32 v52, v52, v53, v54
    v_mul_f32 v49, v49, v50
    v_cvt_pk_bf16_f32 v49, v49, v49
    v_and_b32 v48, 0xffff0000, v48
    v_and_b32 v49, 0xffff0000, v49
    v_mul_f32 v49, v49, v48
    v_cvt_pk_bf16_f32 v49, v49, v49
    v_bitop3_b32 v52, v52, v55, s29 bitop3:0x54
    v_cmp_ne_u32 vcc, 0, v52
    """)
    k.stamp(6)
    for t in range(8):
        a = 40 + 4 * (t & 1)
        for d in range(4):
            k(f"v_and_b32_dpp v{a+d}, v49, v{28+d} row_newbcast:{t} row_mask:0xf bank_mask:0xf")
        if t == 0:
            k("s_cbranch_vccnz L_p1")
        if t > 0:
            pa = 40 + 4 * ((t - 1) & 1)
            c = "0" if t == 1 else "v[24:27]"
            k(f"v_mfma_f32_16x16x32_bf16 v[24:27], v[{pa}:{pa+3}], v[{WD+4*(t-1)}:{WD+4*(t-1)+3}], {c}")
    k("s_cmp_lg_u64 s[36:37], 0")
    k(f"v_mfma_f32_16x16x32_bf16 v[24:27], v[44:47], v[{WD+28}:{WD+31}], v[24:27]")
    if stamps:
        k("s_mov_b32 s84, s5")
        k("s_mov_b32 s86, s36")
    if force == "mix":
        k("s_bitcmp1_b32 s21, 0")
    if force == "slow":
        k("s_cmp_eq_u32 s21, s21")
    k(f"""
    s_mov_b32 exec_hi, 0
    s_nop 6
    """)
    for r in range(4):
        k(f"v_and_or_b32 v{24+r}, v{24+r}, s32, v128")
    k(f"""
    s_cbranch_scc1 L_slow
    global_store_dwordx4 v22, v[24:27], s[18:19] {x2s}
    """)
    if stamps:
        k.stamp(7)
        k("s_branch L_fin")
    else:
        k("s_endpgm")
    k("L_slow:")
    k("global_store_dwordx4 v22, v[24:27], s[18:19] sc1")
    if stamps:
        k.stamp(7)
        k("s_branch L_fin")
    else:
        k("L_end:")
        k("s_endpgm")
    k(f"""
    L_cons:
    s_cmpk_ge_u32 s2, 256
    s_cbranch_scc1 L_end
    s_load_dwordx2 s[16:17], s[0:1], 32
    s_and_b32 s20, s2, 7
    s_lshl_b32 s20, s20, 5
    s_and_b32 s21, s2, 24
    s_add_u32 s20, s20, s21
    s_lshr_b32 s24, s24, 6
    s_add_u32 s21, s20, s24
    s_lshl_b32 s22, {"s20" if lay == "lds" else "s21"}, 2
    s_add_u32 s25, s22, {EP_OFF}
    s_waitcnt lgkmcnt(0)
    s_load_dword s23, s[18:19], s25
    s_load_dword s26, s[18:19], 0
    v_bfe_u32 v7, v0, 4, 2
    s_lshl_b32 s4, s21, 3
    v_lshl_add_u32 v7, v7, 1, s4
    """)
    if lay == "line":
        k(f"""
        s_lshl_b32 s4, s20, 7
        s_add_u32 s4, s4, s24
        s_lshl_b32 s4, s4, 4
        s_add_u32 s4, s4, {X2_OFF}
        v_and_b32 v3, 63, v0
        v_lshl_add_u32 v130, v3, 7, s4
        v_min_u32 v131, 47, v3
        s_addk_i32 s4, 8192
        v_lshl_add_u32 v131, v131, 7, s4
        """)
    else:
        if lay == "sc":
            k("s_lshl_b32 s4, s21, 11")
        else:
            k("""
            s_lshl_b32 s4, s20, 11
            s_mul_i32 s3, s24, 1792
            s_add_u32 s4, s4, s3
            """)
        k(f"""
        s_add_u32 s4, s4, {X2_OFF}
        v_and_b32 v3, 63, v0
        v_lshl_add_u32 v130, v3, 4, s4
        v_min_u32 v131, 47, v3
        s_addk_i32 s4, 1024
        v_lshl_add_u32 v131, v131, 4, s4
        """)
    if lay == "lds":
        k("""
        v_and_b32 v8, 7, v0
        v_bfe_u32 v9, v0, 4, 2
        v_lshl_add_u32 v8, v8, 2, v9
        s_lshl_b32 s3, s24, 2
        v_lshl_add_u32 v8, v8, 5, s3
        v_and_b32 v7, 31, v0
        v_lshlrev_b32 v9, 5, v7
        s_lshl_b32 s3, s20, 3
        v_lshl_add_u32 v7, v7, 1, s3
        """)
    k(f"""
    v_cmp_gt_u32 vcc, 48, v3
    s_getreg_b32 s33, hwreg(HW_REG_XCC_ID, 0, 4)
    s_movk_i32 s32, {hex(0xffff ^ TM2)}
    v_cndmask_b32 v135, 0, 1.0, vcc
    v_mov_b32 v4, s22
    s_mov_b32 s5, {spin}
    s_waitcnt lgkmcnt(0)
    s_add_u32 s23, s23, 1
    s_add_u32 s26, s26, 1
    s_lshl_b32 s4, s23, 4
    s_or_b32 s33, s33, s4
    v_mov_b32 v5, s33
    global_store_dword v4, v5, s[18:19] offset:{HL_OFF}
    s_and_b32 s4, s23, 255
    s_addk_i32 s4, 0x180
    v_mov_b32 v136, s4
    v_mov_b32 v6, s23
    """)
    if amp:
        k("""
        s_and_b32 s4, s2, 31
        s_lshl_b32 s4, s4, 7
        s_add_u32 s4, s4, 0x200000
        v_mov_b32 v10, s4
        v_mov_b32 v11, s90
        global_store_dword v10, v11, s[18:19] sc1
        v_and_b32 v10, 31, v0
        v_lshlrev_b32 v10, 7, v10
        v_add_u32 v10, 0x200000, v10
        """)
    def poll2(a, mask=None):
        if mask and shrink: k(f"s_mov_b64 exec, {mask}")
        k(f"""
        global_load_dwordx4 v[{a}:{a+3}], v130, s[18:19] {pf}
        global_load_dwordx4 v[{a+4}:{a+7}], v131, s[18:19] {pf}
        """)
        if mask and shrink: k(f"s_mov_b64 exec, -1")
    def red2(a):
        k(f"""
        v_fma_f32 v48, v{a+4}, v135, v{a}
        v_fma_f32 v50, v{a+6}, v135, v{a+2}
        v_fma_f32 v49, v{a+5}, v135, v{a+1}
        v_fma_f32 v51, v{a+7}, v135, v{a+3}
        v_bitop3_b32 v52, v{a}, v{a+1}, v136 {NEQ}
        v_permlane32_swap_b32 v48, v50
        v_permlane32_swap_b32 v49, v51
        v_add_f32 v48, v48, v50
        v_add_f32 v49, v49, v51
        v_bitop3_b32 v53, v{a+2}, v{a+3}, v136 {NEQ}
        v_bitop3_b32 v54, v{a+4}, v{a+5}, v136 {NEQ}
        v_permlane16_swap_b32 v48, v49
        v_add_f32 v48, v48, v49
        v_bitop3_b32 v55, v{a+6}, v{a+7}, v136 {NEQ}
        v_or3_b32 v52, v52, v53, v54
        v_add_f32_dpp v48, v48, v48 row_ror:8 row_mask:0xf bank_mask:0xf
        v_bitop3_b32 v52, v52, v55, s32 bitop3:0x54
        v_cmp_ne_u32 vcc, 0, v52
        """)
        if lay == "lds":
            k("ds_write_b32 v8, v48")
        else:
            k("v_add_f32_dpp v48, v48, v48 row_ror:4 row_mask:0xf bank_mask:0xf")
    if pipe2:
        poll2(32)
        k("s_mov_b64 vcc, -1")
        k("L_p2:")
        poll2(56, "vcc")
        k("s_waitcnt vmcnt(2)")
        red2(32)
        k("s_cbranch_vccz L_p2x")
        poll2(32, "vcc")
        k("s_sub_u32 s5, s5, 1")
        k("s_cbranch_scc1 L_end")
        k("s_waitcnt vmcnt(2)")
        red2(56)
        k("s_cbranch_vccnz L_p2")
        k("L_p2x:")
        k("s_nop 0")
    else:
        k("s_mov_b64 vcc, -1")
        k("L_p2:")
        if csleep: k(f"s_sleep {csleep}")
        poll2(32, "vcc")
        k("s_sub_u32 s5, s5, 1")
        k("s_cbranch_scc1 L_end")
        k("s_waitcnt vmcnt(0)")
        red2(32)
        k("s_cbranch_vccnz L_p2")
        k("s_nop 0")
    k.stamp(8)
    if lay == "lds":
        k(f"""
        s_cmp_lg_u32 s24, 0
        s_waitcnt lgkmcnt(0)
        s_barrier
        s_cbranch_scc1 L_fin
        ds_read_b128 v[64:67], v9
        ds_read_b128 v[68:71], v9 offset:16
        s_mov_b32 exec_hi, 0
        s_cmp_lg_u32 s21, 0
        v_mov_b32 v5, s26
        s_waitcnt lgkmcnt(1)
        v_add_f32 v64, v64, v65
        v_add_f32 v66, v66, v67
        s_waitcnt lgkmcnt(0)
        v_add_f32 v68, v68, v69
        v_add_f32 v70, v70, v71
        v_add_f32 v64, v64, v66
        v_add_f32 v68, v68, v70
        v_add_f32 v64, v64, v68
        v_cvt_pk_bf16_f32 v48, v64, v64
        global_store_short v7, v48, s[16:17] {outf}
        global_store_dword v4, v6, s[18:19] offset:{EP_OFF}
        s_cbranch_scc1 L_fin2
        global_store_dword v4, v5, s[18:19]
        L_fin2:
        """)
        if amp:
            k(f"""
            s_waitcnt vmcnt(0)
            s_memrealtime s[92:93]
            global_load_dword v11, v10, s[18:19] sc1
            s_waitcnt vmcnt(0) lgkmcnt(0)
            v_sub_u32 v11, s92, v11
            s_mov_b32 s4, 0
            s_mov_b32 s3, -1
            """)
            for i in range(32):
                k(f"v_readlane_b32 s5, v11, {i}")
                if am in ("max", "skew"): k("s_max_u32 s4, s4, s5")
                if am in ("min", "skew"): k("s_min_u32 s3, s3, s5")
                if am == "mean": k("s_add_u32 s4, s4, s5")
            if am == "min": k("s_mov_b32 s4, s3")
            if am == "skew": k("s_sub_u32 s4, s4, s3")
            if am == "mean": k("s_lshr_b32 s4, s4, 5")
            k(f"""
            s_min_u32 s4, s4, 1500
            s_mul_i32 s4, s4, {amp}
            L_spin:
            s_sleep 1
            s_memrealtime s[6:7]
            s_waitcnt lgkmcnt(0)
            s_sub_u32 s5, s6, s92
            s_cmp_lt_u32 s5, s4
            s_cbranch_scc1 L_spin
            """)
        if probe is not None:
            pa, pb = probe // 16, probe % 16
            k(f"""
            global_load_dwordx4 v[64:67], v4, s[18:19] offset:3072 sc1
            global_load_dwordx4 v[68:71], v4, s[18:19] offset:3088 sc1
            s_memrealtime s[92:93]
            s_waitcnt vmcnt(0) lgkmcnt(0)
            v_readfirstlane_b32 s6, v{64+pa}
            v_readfirstlane_b32 s7, v{64+pb}
            s_sub_u32 s4, s7, s6
            s_add_u32 s4, s4, 50
            s_max_i32 s4, s4, 0
            s_min_u32 s4, s4, 400
            s_mul_i32 s4, s4, 20
            L_spin:
            s_sleep 1
            s_memrealtime s[6:7]
            s_waitcnt lgkmcnt(0)
            s_sub_u32 s5, s6, s92
            s_cmp_lt_u32 s5, s4
            s_cbranch_scc1 L_spin
            """)
        if iprobe is not None:
            k(f"""
            s_waitcnt vmcnt(0)
            s_memrealtime s[88:89]
            s_waitcnt lgkmcnt(0)
            s_branch L_far1
            L_back:
            s_sub_u32 s4, s{88+2*(iprobe%16)}, s{88+2*(iprobe//16)}
            s_min_u32 s4, s4, 400
            s_mul_i32 s4, s4, 20
            L_spin:
            s_sleep 1
            s_memrealtime s[6:7]
            s_waitcnt lgkmcnt(0)
            s_sub_u32 s5, s6, s92
            s_cmp_lt_u32 s5, s4
            s_cbranch_scc1 L_spin
            """)
        k("L_fin:")
    else:
      k(f"""
    v_add_f32_dpp v48, v48, v48 row_ror:2 row_mask:0xf bank_mask:0xf
    s_cmp_lg_u32 s21, 0
    v_mov_b32 v5, s26
    v_add_f32_dpp v48, v48, v48 row_ror:1 row_mask:0xf bank_mask:0xf
    s_mov_b32 exec_lo, 0x00010001
    s_mov_b32 exec_hi, 0x00010001
    v_cvt_pk_bf16_f32 v48, v48, v48
    global_store_short v7, v48, s[16:17] {outf}
    global_store_dword v4, v6, s[18:19] offset:{EP_OFF}
    s_cbranch_scc1 L_fin
    global_store_dword v4, v5, s[18:19]
    L_fin:
    """)
    if iprobe is not None:
        k.A(".set L_far1, L_fin")
    if stamps:
        k("s_mov_b64 exec, -1")
        k("s_waitcnt vmcnt(0)")
        k.stamp(9)
        k.dump_stamps(18, n=12, vtmp=40)
        k("L_end:")
    text = k.finish(140, 96)
    text = add_touch_points(text, limit="L_cons")
    if iprobe is not None:
        far = """
.p2align 12
L_far1:
  s_memrealtime s[90:91]
  s_waitcnt lgkmcnt(0)
  s_branch L_far2
.p2align 11
L_far2:
  s_memrealtime s[92:93]
  s_waitcnt lgkmcnt(0)
  s_branch L_back
"""
        text = text.replace('.section .rodata', far + '.section .rodata').replace(".set L_far1, L_fin", "")
    return text

from gen4 import parse
if __name__ == "__main__":
    names = []
    for spec in sys.argv[1:]:
        nm = "v6_" + spec.replace(",", "_").replace("=", "").replace("+", "") + ".s"
        open(nm, "w").write(gen(**parse(spec)))
        names.append(nm)
    print(" ".join(names))
```

```python
import sys
from kcommon import *
EP_OFF = 0x400
HL_OFF = 0x800
X1_OFF = 0x1000
X2_OFF = 0x40000
NEQ = "bitop3:0x7e"
def gen(stamps=False, W=6, pause=4, bar=1, ldf="nt", x1s="sc1", x2s="", pf="sc1", midpoll=3, spin=0x20000,
        epstep=1, helstep=8, force=None, align=12, pipe2=1, outf="", csleep=0, d1=0, shrink=1, lay='lds', probe=None, iprobe=None, amp=0, helper=1, am='max', wamp=None):
    k = K(256, 512, 1024 if lay == "lds" else 0, stamps=stamps, sbase=64, align=align)
    if wamp is not None:
        def st(i):
            if i == 0 or i == wamp:
                k.A(f"  s_memrealtime s[{64+2*i}:{65+2*i}]")
        k.stamp = st
    TM1, TM2 = 0xff, 0x3ff
    W1, WD = 32, 96
    k.stamp(0)
    if probe is not None or amp:
        k("s_memrealtime s[90:91]")
    k(f"""
    s_load_dwordx8 s[8:15], s[0:1], 0
    s_load_dwordx2 s[18:19], s[0:1], 48
    v_readfirstlane_b32 s24, v0
    s_cmp_ge_u32 s2, 224
    s_cbranch_scc1 L_cons
    s_cmpk_lt_u32 s24, 256
    s_cselect_b64 exec, -1, 0
    s_cbranch_execz {'L_t1' if helper else 'L_end'}
    s_and_b32 s20, s2, 7
    s_lshr_b32 s21, s2, 3
    v_and_b32 v5, 7, v0
    v_bfe_u32 v6, v0, 3, 3
    s_lshr_b32 s25, s24, 7
    s_add_u32 s22, s21, s25
    s_cmp_eq_u32 s22, 28
    s_cselect_b32 s22, 0, s22
    s_and_b32 s26, s24, 64
    s_mul_i32 s3, s20, {128*7168}
    s_lshl_b32 s4, s22, 8
    s_add_u32 s3, s3, s4
    s_lshl_b32 s4, s26, 1
    s_add_u32 s3, s3, s4
    s_addk_i32 s3, 3584
    v_mul_u32_u24 v1, {16*7168}, v6
    v_lshl_add_u32 v1, v5, 4, v1
    v_add_u32 v1, s3, v1
    s_lshl_b32 s35, s20, 8
    v_lshl_add_u32 v3, v6, 5, s35
    s_movk_i32 s6, 14336
    s_cmp_eq_u32 s25, 0
    s_waitcnt lgkmcnt(0)
    s_cselect_b32 s10, s10, s12
    s_cselect_b32 s11, s11, s13
    """)
    k.stamp(1)
    seq = []
    def vm(name, text):
        seq.append(name); k(text)
    def wait_for(name):
        n = len(seq) - 1 - seq.index(name)
        k(f"s_waitcnt vmcnt({n})")
    vm("x0", "global_load_dwordx4 v[8:11], v3, s[8:9]")
    vm("x1", "global_load_dwordx4 v[12:15], v3, s[8:9] offset:16")
    def issue(n):
        if n < 16:
            off = -3584 if n % 2 == 0 else 3584
            vm(n, f"global_load_dwordx4 v[{W1+4*n}:{W1+4*n+3}], v1, s[10:11] offset:{off} {ldf}")
            if n % 2 == 1 and n < 15:
                k("v_add_u32 v1, s6, v1")
        else:
            t = n - 16
            vm(n, f"global_load_dwordx4 v[{WD+4*t}:{WD+4*t+3}], v2, s[14:15] {ldf}")
            if t < 7:
                k("v_add_u32 v2, s7, v2")
    gate = [n - W if n < 16 + pause else 99 for n in range(24)]
    nxt = 0
    while gate[nxt] < 0:
        issue(nxt); nxt += 1
    k(f"""
    s_load_dword s23, s[18:19], 0
    s_lshl_b32 s3, s21, 8
    s_add_u32 s27, s3, s24
    s_lshl_b32 s3, s27, 10
    s_add_u32 s3, s3, s35
    v_bfe_u32 v7, v0, 4, 2
    v_and_b32 v16, 15, v0
    v_lshlrev_b32 v2, 11, v7
    v_lshl_add_u32 v2, v16, 4, v2
    v_add_u32 v2, s3, v2
    s_movk_i32 s7, 8192
    v_and_b32 v17, 1, v0
    v_lshlrev_b32 v17, 4, v17
    s_mov_b32 s4, 0xffff
    v_lshlrev_b32 v17, v17, s4
    v_lshrrev_b32 v18, 1, v5
    v_cmp_eq_u32 s[36:37], 0, v18
    v_cmp_eq_u32 s[38:39], 1, v18
    v_cmp_eq_u32 s[40:41], 2, v18
    v_cmp_eq_u32 vcc, 3, v18
    v_cndmask_b32 v28, 0, v17, s[36:37]
    v_cndmask_b32 v29, 0, v17, s[38:39]
    v_cndmask_b32 v30, 0, v17, s[40:41]
    v_cndmask_b32 v31, 0, v17, vcc
    s_mov_b32 s30, 0x01000100
    s_mov_b32 s31, 0x03020302
    """)
    k(f"""
    s_lshl_b32 s3, s22, 1
    s_add_u32 s3, s3, s25
    s_lshl_b32 s3, s3, 3
    s_add_u32 s3, s3, s20
    s_lshl_b32 s3, s3, 7
    s_add_u32 s3, s3, s26
    s_lshl_b32 s3, s3, 2
    s_addk_i32 s3, {X1_OFF}
    v_and_b32 v19, 16, v0
    v_lshl_add_u32 v20, v5, 5, v19
    v_add_u32 v20, s3, v20
    s_lshl_b32 s3, s21, 12
    s_add_u32 s3, s3, s24
    s_lshl_b32 s3, s3, 1
    s_addk_i32 s3, {X1_OFF + 2048}
    v_lshlrev_b32 v21, 9, v6
    v_lshl_add_u32 v21, v5, 4, v21
    v_add_u32 v21, s3, v21
    """)
    if lay == "sc":
        k(f"""
        s_add_u32 s3, s20, {X2_OFF >> 16}
        s_lshl_b32 s3, s3, 16
        s_lshr_b32 s4, s27, 2
        s_add_u32 s3, s3, s4
        v_lshlrev_b32 v22, 12, v16
        v_lshl_add_u32 v22, v19, 7, v22
        v_add_u32 v22, s3, v22
        """)
    else:
        k(f"""
        s_add_u32 s3, s20, {X2_OFF >> 16}
        s_lshl_b32 s3, s3, 15
        s_add_u32 s3, s3, s27
        s_lshl_b32 s3, s3, 1
        v_bfe_u32 v22, v0, 2, 2
        v_lshlrev_b32 v22, 14, v22
        v_and_b32 v17, 3, v0
        v_lshl_add_u32 v17, v17, 5, v19
        v_add3_u32 v22, v22, v17, s3
        """)
    if lay == "lds":
        k("""
        v_and_b32 v16, 12, v16
        v_mov_b32 v19, 0
        """)
    k(f"""
    v_lshrrev_b32 v7, 2, v19
    v_lshl_add_u32 v7, v16, 3, v7
    s_lshl_b32 s3, s20, 7
    v_add_u32 v7, s3, v7
    s_getreg_b32 s33, hwreg(HW_REG_XCC_ID, 0, 4)
    s_movk_i32 s29, {hex(0xffff ^ TM1)}
    s_movk_i32 s32, {hex(0xffff ^ TM2)}
    """)
    k.stamp(2)
    wait_for("x1")
    for i in range(16):
        k(f"v_perm_b32 v4, v{8+i//2}, v{8+i//2}, s{30+(i&1)}")
        for d in range(4):
            k(f"v_and_b32 v{16+d}, v4, v{28+d}")
        wait_for(i)
        if i == 0 and wamp == 11: k.stamp(11)
        if i == 7 and wamp == 12: k.stamp(12)
        did = False
        while nxt < 24 and gate[nxt] <= i:
            issue(nxt); nxt += 1; did = True
        if i == epstep:
            vm("ep", f"global_load_dword v128, v7, s[18:19] offset:{EP_OFF}"); did = True
        if i == helstep:
            vm("hel", f"global_load_dword v129, v7, s[18:19] offset:{HL_OFF} {pf}"); did = True
        if not did:
            k("s_nop 0")
        c = "0" if i == 0 else "v[24:27]"
        k(f"v_mfma_f32_16x16x32_bf16 v[24:27], v[16:19], v[{W1+4*i}:{W1+4*i+3}], {c}")
    assert seq.index("hel") < seq.index(15) and seq.index("ep") < seq.index(15)
    k.stamp(3)
    k(f"""
    s_waitcnt lgkmcnt(0)
    s_add_u32 s23, s23, 1
    s_and_b32 s4, s23, 63
    s_addk_i32 s4, 0x60
    v_mov_b32 v23, s4
    v_add_u32 v128, 1, v128
    v_lshl_or_b32 v130, v128, 4, s33
    v_cmp_ne_u32 s[36:37], v130, v129
    """)
    for r in range(4):
        k(f"v_permlane32_swap_b32 v{24+r}, v{16+r}")
    for r in range(4):
        k(f"v_add_f32_dpp v{24+r}, v{16+r}, v{24+r} row_ror:8 row_mask:0xf bank_mask:0xf")
    k("s_mov_b64 exec, 0x00ff00ff")
    for r in range(4):
        k(f"v_and_or_b32 v{24+r}, v{24+r}, s29, v23")
    vm("x1st", f"global_store_dwordx4 v20, v[24:27], s[18:19] {x1s}")
    k("s_mov_b64 exec, -1")
    if probe is not None:
        k("""
        v_mov_b32 v132, s90
        s_lshl_b32 s4, s2, 2
        v_mov_b32 v133, s4
        """)
        vm("pst", "global_store_dword v133, v132, s[18:19] offset:3072 sc1")
    k.stamp(4)
    if bar: k("s_barrier")
    while nxt < 24:
        issue(nxt); nxt += 1
    k(f"""
    s_mov_b32 s5, {spin}
    v_and_b32 v128, 0xff, v128
    v_add_u32 v128, 0x180, v128
    """)
    wait_for(24 - midpoll)
    if d1: k(f"s_sleep {d1}")
    if stamps: k.stamp(2)
    if wamp == 10: k.stamp(10)
    k(f"""
    L_p1:
    global_load_dwordx4 v[32:35], v21, s[18:19] offset:-2048 {pf}
    global_load_dwordx4 v[36:39], v21, s[18:19] offset:2048 {pf}
    s_sub_u32 s5, s5, 1
    s_cbranch_scc1 L_end
    s_waitcnt vmcnt(0)
    """)
    k.stamp(5)
    k(f"""
    v_permlane32_swap_b32 v32, v34
    v_permlane32_swap_b32 v33, v35
    v_permlane32_swap_b32 v36, v38
    v_permlane32_swap_b32 v37, v39
    v_add_f32 v48, v32, v34
    v_add_f32 v49, v33, v35
    v_add_f32 v50, v36, v38
    v_add_f32 v51, v37, v39
    v_bitop3_b32 v52, v32, v33, v23 {NEQ}
    v_permlane16_swap_b32 v48, v49
    v_bitop3_b32 v53, v34, v35, v23 {NEQ}
    v_permlane16_swap_b32 v50, v51
    v_add_f32 v48, v48, v49
    v_add_f32 v50, v50, v51
    v_bitop3_b32 v54, v36, v37, v23 {NEQ}
    v_add_f32_dpp v48, v48, v48 row_ror:8 row_mask:0xf bank_mask:0xf
    v_add_f32_dpp v50, v50, v50 row_ror:8 row_mask:0xf bank_mask:0xf
    v_cvt_pk_bf16_f32 v48, v48, v50
    v_lshlrev_b32 v49, 16, v48
    v_mul_f32 v50, 0xbfb8aa3b, v49
    v_exp_f32 v50, v50
    v_bitop3_b32 v55, v38, v39, v23 {NEQ}
    v_add_f32 v50, 1.0, v50
    v_rcp_f32 v50, v50
    v_or3_b32 v52, v52, v53, v54
    v_mul_f32 v49, v49, v50
    v_cvt_pk_bf16_f32 v49, v49, v49
    v_and_b32 v48, 0xffff0000, v48
    v_and_b32 v49, 0xffff0000, v49
    v_mul_f32 v49, v49, v48
    v_cvt_pk_bf16_f32 v49, v49, v49
    v_bitop3_b32 v52, v52, v55, s29 bitop3:0x54
    v_cmp_ne_u32 vcc, 0, v52
    """)
    k.stamp(6)
    for t in range(8):
        a = 40 + 4 * (t & 1)
        for d in range(4):
            k(f"v_and_b32_dpp v{a+d}, v49, v{28+d} row_newbcast:{t} row_mask:0xf bank_mask:0xf")
        if t == 0:
            k("s_cbranch_vccnz L_p1")
        if t > 0:
            pa = 40 + 4 * ((t - 1) & 1)
            c = "0" if t == 1 else "v[24:27]"
            k(f"v_mfma_f32_16x16x32_bf16 v[24:27], v[{pa}:{pa+3}], v[{WD+4*(t-1)}:{WD+4*(t-1)+3}], {c}")
    k("s_cmp_lg_u64 s[36:37], 0")
    k(f"v_mfma_f32_16x16x32_bf16 v[24:27], v[44:47], v[{WD+28}:{WD+31}], v[24:27]")
    if stamps:
        k("s_mov_b32 s84, s5")
        k("s_mov_b32 s86, s36")
    if force == "mix":
        k("s_bitcmp1_b32 s21, 0")
    if force == "slow":
        k("s_cmp_eq_u32 s21, s21")
    k(f"""
    s_mov_b32 exec_hi, 0
    s_nop 6
    """)
    for r in range(4):
        k(f"v_and_or_b32 v{24+r}, v{24+r}, s32, v128")
    k(f"""
    s_cbranch_scc1 L_slow
    global_store_dwordx4 v22, v[24:27], s[18:19] {x2s}
    """)
    if stamps:
        k.stamp(7)
        k("s_branch L_fin")
    else:
        if wamp is not None:
            k.stamp(7)
            k(f"""
            s_memrealtime s[92:93]
            s_waitcnt lgkmcnt(0)
            s_sub_u32 s4, s{64+2*wamp}, s64
            s_min_u32 s4, s4, 1500
            s_mul_i32 s4, s4, 10
            L_spinw:
            s_sleep 4
            s_memrealtime s[6:7]
            s_waitcnt lgkmcnt(0)
            s_sub_u32 s5, s6, s92
            s_cmp_lt_u32 s5, s4
            s_cbranch_scc1 L_spinw
            """)
        k("s_endpgm")
    k("L_slow:")
    k("global_store_dwordx4 v22, v[24:27], s[18:19] sc1")
    if stamps:
        k.stamp(7)
        k("s_branch L_fin")
    else:
        k("L_end:")
        k("s_endpgm")
    k(f"""
    L_cons:
    s_cmpk_ge_u32 s2, 256
    s_cbranch_scc1 L_end
    s_load_dwordx2 s[16:17], s[0:1], 32
    s_and_b32 s20, s2, 7
    s_lshl_b32 s20, s20, 5
    s_and_b32 s21, s2, 24
    s_add_u32 s20, s20, s21
    s_lshr_b32 s24, s24, 6
    s_add_u32 s21, s20, s24
    s_lshl_b32 s22, {"s20" if lay == "lds" else "s21"}, 2
    s_add_u32 s25, s22, {EP_OFF}
    s_waitcnt lgkmcnt(0)
    s_load_dword s23, s[18:19], s25
    s_load_dword s26, s[18:19], 0
    v_bfe_u32 v7, v0, 4, 2
    s_lshl_b32 s4, s21, 3
    v_lshl_add_u32 v7, v7, 1, s4
    """)
    if lay == "line":
        k(f"""
        s_lshl_b32 s4, s20, 7
        s_add_u32 s4, s4, s24
        s_lshl_b32 s4, s4, 4
        s_add_u32 s4, s4, {X2_OFF}
        v_and_b32 v3, 63, v0
        v_lshl_add_u32 v130, v3, 7, s4
        v_min_u32 v131, 47, v3
        s_addk_i32 s4, 8192
        v_lshl_add_u32 v131, v131, 7, s4
        """)
    else:
        if lay == "sc":
            k("s_lshl_b32 s4, s21, 11")
        else:
            k("""
            s_lshl_b32 s4, s20, 11
            s_mul_i32 s3, s24, 1792
            s_add_u32 s4, s4, s3
            """)
        k(f"""
        s_add_u32 s4, s4, {X2_OFF}
        v_and_b32 v3, 63, v0
        v_lshl_add_u32 v130, v3, 4, s4
        v_min_u32 v131, 47, v3
        s_addk_i32 s4, 1024
        v_lshl_add_u32 v131, v131, 4, s4
        """)
    if lay == "lds":
        k("""
        v_and_b32 v8, 7, v0
        v_bfe_u32 v9, v0, 4, 2
        v_lshl_add_u32 v8, v8, 2, v9
        s_lshl_b32 s3, s24, 2
        v_lshl_add_u32 v8, v8, 5, s3
        v_and_b32 v7, 31, v0
        v_lshlrev_b32 v9, 5, v7
        s_lshl_b32 s3, s20, 3
        v_lshl_add_u32 v7, v7, 1, s3
        """)
    k(f"""
    v_cmp_gt_u32 vcc, 48, v3
    s_getreg_b32 s33, hwreg(HW_REG_XCC_ID, 0, 4)
    s_movk_i32 s32, {hex(0xffff ^ TM2)}
    v_cndmask_b32 v135, 0, 1.0, vcc
    v_mov_b32 v4, s22
    s_mov_b32 s5, {spin}
    s_waitcnt lgkmcnt(0)
    s_add_u32 s23, s23, 1
    s_add_u32 s26, s26, 1
    s_lshl_b32 s4, s23, 4
    s_or_b32 s33, s33, s4
    v_mov_b32 v5, s33
    global_store_dword v4, v5, s[18:19] offset:{HL_OFF}
    s_and_b32 s4, s23, 255
    s_addk_i32 s4, 0x180
    v_mov_b32 v136, s4
    v_mov_b32 v6, s23
    """)
    if amp:
        k("""
        s_and_b32 s4, s2, 31
        s_lshl_b32 s4, s4, 7
        s_add_u32 s4, s4, 0x200000
        v_mov_b32 v10, s4
        v_mov_b32 v11, s90
        global_store_dword v10, v11, s[18:19] sc1
        v_and_b32 v10, 31, v0
        v_lshlrev_b32 v10, 7, v10
        v_add_u32 v10, 0x200000, v10
        """)
    def poll2(a, mask=None):
        if mask and shrink: k(f"s_mov_b64 exec, {mask}")
        k(f"""
        global_load_dwordx4 v[{a}:{a+3}], v130, s[18:19] {pf}
        global_load_dwordx4 v[{a+4}:{a+7}], v131, s[18:19] {pf}
        """)
        if mask and shrink: k(f"s_mov_b64 exec, -1")
    def red2(a):
        k(f"""
        v_fma_f32 v48, v{a+4}, v135, v{a}
        v_fma_f32 v50, v{a+6}, v135, v{a+2}
        v_fma_f32 v49, v{a+5}, v135, v{a+1}
        v_fma_f32 v51, v{a+7}, v135, v{a+3}
        v_bitop3_b32 v52, v{a}, v{a+1}, v136 {NEQ}
        v_permlane32_swap_b32 v48, v50
        v_permlane32_swap_b32 v49, v51
        v_add_f32 v48, v48, v50
        v_add_f32 v49, v49, v51
        v_bitop3_b32 v53, v{a+2}, v{a+3}, v136 {NEQ}
        v_bitop3_b32 v54, v{a+4}, v{a+5}, v136 {NEQ}
        v_permlane16_swap_b32 v48, v49
        v_add_f32 v48, v48, v49
        v_bitop3_b32 v55, v{a+6}, v{a+7}, v136 {NEQ}
        v_or3_b32 v52, v52, v53, v54
        v_add_f32_dpp v48, v48, v48 row_ror:8 row_mask:0xf bank_mask:0xf
        v_bitop3_b32 v52, v52, v55, s32 bitop3:0x54
        v_cmp_ne_u32 vcc, 0, v52
        """)
        if lay == "lds":
            k("ds_write_b32 v8, v48")
        else:
            k("v_add_f32_dpp v48, v48, v48 row_ror:4 row_mask:0xf bank_mask:0xf")
    if pipe2:
        poll2(32)
        k("s_mov_b64 vcc, -1")
        k("L_p2:")
        poll2(56, "vcc")
        k("s_waitcnt vmcnt(2)")
        red2(32)
        k("s_cbranch_vccz L_p2x")
        poll2(32, "vcc")
        k("s_sub_u32 s5, s5, 1")
        k("s_cbranch_scc1 L_end")
        k("s_waitcnt vmcnt(2)")
        red2(56)
        k("s_cbranch_vccnz L_p2")
        k("L_p2x:")
        k("s_nop 0")
    else:
        k("s_mov_b64 vcc, -1")
        k("L_p2:")
        if csleep: k(f"s_sleep {csleep}")
        poll2(32, "vcc")
        k("s_sub_u32 s5, s5, 1")
        k("s_cbranch_scc1 L_end")
        k("s_waitcnt vmcnt(0)")
        red2(32)
        k("s_cbranch_vccnz L_p2")
        k("s_nop 0")
    k.stamp(8)
    if lay == "lds":
        k(f"""
        s_cmp_lg_u32 s24, 0
        s_waitcnt lgkmcnt(0)
        s_barrier
        s_cbranch_scc1 L_fin
        ds_read_b128 v[64:67], v9
        ds_read_b128 v[68:71], v9 offset:16
        s_mov_b32 exec_hi, 0
        s_cmp_lg_u32 s21, 0
        v_mov_b32 v5, s26
        s_waitcnt lgkmcnt(1)
        v_add_f32 v64, v64, v65
        v_add_f32 v66, v66, v67
        s_waitcnt lgkmcnt(0)
        v_add_f32 v68, v68, v69
        v_add_f32 v70, v70, v71
        v_add_f32 v64, v64, v66
        v_add_f32 v68, v68, v70
        v_add_f32 v64, v64, v68
        v_cvt_pk_bf16_f32 v48, v64, v64
        global_store_short v7, v48, s[16:17] {outf}
        global_store_dword v4, v6, s[18:19] offset:{EP_OFF}
        s_cbranch_scc1 L_fin2
        global_store_dword v4, v5, s[18:19]
        L_fin2:
        """)
        if amp:
            k(f"""
            s_waitcnt vmcnt(0)
            s_memrealtime s[92:93]
            global_load_dword v11, v10, s[18:19] sc1
            s_waitcnt vmcnt(0) lgkmcnt(0)
            v_sub_u32 v11, s92, v11
            s_mov_b32 s4, 0
            s_mov_b32 s3, -1
            """)
            for i in range(32):
                k(f"v_readlane_b32 s5, v11, {i}")
                if am in ("max", "skew"): k("s_max_u32 s4, s4, s5")
                if am in ("min", "skew"): k("s_min_u32 s3, s3, s5")
                if am == "mean": k("s_add_u32 s4, s4, s5")
            if am == "min": k("s_mov_b32 s4, s3")
            if am == "skew": k("s_sub_u32 s4, s4, s3")
            if am == "mean": k("s_lshr_b32 s4, s4, 5")
            k(f"""
            s_min_u32 s4, s4, 1500
            s_mul_i32 s4, s4, {amp}
            L_spin:
            s_sleep 1
            s_memrealtime s[6:7]
            s_waitcnt lgkmcnt(0)
            s_sub_u32 s5, s6, s92
            s_cmp_lt_u32 s5, s4
            s_cbranch_scc1 L_spin
            """)
        if probe is not None:
            pa, pb = probe // 16, probe % 16
            k(f"""
            global_load_dwordx4 v[64:67], v4, s[18:19] offset:3072 sc1
            global_load_dwordx4 v[68:71], v4, s[18:19] offset:3088 sc1
            s_memrealtime s[92:93]
            s_waitcnt vmcnt(0) lgkmcnt(0)
            v_readfirstlane_b32 s6, v{64+pa}
            v_readfirstlane_b32 s7, v{64+pb}
            s_sub_u32 s4, s7, s6
            s_add_u32 s4, s4, 50
            s_max_i32 s4, s4, 0
            s_min_u32 s4, s4, 400
            s_mul_i32 s4, s4, 20
            L_spin:
            s_sleep 1
            s_memrealtime s[6:7]
            s_waitcnt lgkmcnt(0)
            s_sub_u32 s5, s6, s92
            s_cmp_lt_u32 s5, s4
            s_cbranch_scc1 L_spin
            """)
        if iprobe is not None:
            k(f"""
            s_waitcnt vmcnt(0)
            s_memrealtime s[88:89]
            s_waitcnt lgkmcnt(0)
            s_branch L_far1
            L_back:
            s_sub_u32 s4, s{88+2*(iprobe%16)}, s{88+2*(iprobe//16)}
            s_min_u32 s4, s4, 400
            s_mul_i32 s4, s4, 20
            L_spin:
            s_sleep 1
            s_memrealtime s[6:7]
            s_waitcnt lgkmcnt(0)
            s_sub_u32 s5, s6, s92
            s_cmp_lt_u32 s5, s4
            s_cbranch_scc1 L_spin
            """)
        k("L_fin:")
    else:
      k(f"""
    v_add_f32_dpp v48, v48, v48 row_ror:2 row_mask:0xf bank_mask:0xf
    s_cmp_lg_u32 s21, 0
    v_mov_b32 v5, s26
    v_add_f32_dpp v48, v48, v48 row_ror:1 row_mask:0xf bank_mask:0xf
    s_mov_b32 exec_lo, 0x00010001
    s_mov_b32 exec_hi, 0x00010001
    v_cvt_pk_bf16_f32 v48, v48, v48
    global_store_short v7, v48, s[16:17] {outf}
    global_store_dword v4, v6, s[18:19] offset:{EP_OFF}
    s_cbranch_scc1 L_fin
    global_store_dword v4, v5, s[18:19]
    L_fin:
    """)
    if iprobe is not None:
        k.A(".set L_far1, L_fin")
    if stamps:
        k("s_mov_b64 exec, -1")
        k("s_waitcnt vmcnt(0)")
        k.stamp(9)
        k.dump_stamps(18, n=12, vtmp=40)
        k("L_end:")
    text = k.finish(140, 96)
    text = add_touch_points(text, limit="L_cons")
    if iprobe is not None:
        far = """
.p2align 12
L_far1:
  s_memrealtime s[90:91]
  s_waitcnt lgkmcnt(0)
  s_branch L_far2
.p2align 11
L_far2:
  s_memrealtime s[92:93]
  s_waitcnt lgkmcnt(0)
  s_branch L_back
"""
        text = text.replace('.section .rodata', far + '.section .rodata').replace(".set L_far1, L_fin", "")
    return text

from gen4 import parse
if __name__ == "__main__":
    names = []
    for spec in sys.argv[1:]:
        nm = "v6_" + spec.replace(",", "_").replace("=", "").replace("+", "") + ".s"
        open(nm, "w").write(gen(**parse(spec)))
        names.append(nm)
    print(" ".join(names))
```

```python
import sys
from kcommon import *
EP_OFF = 0x400
HL_OFF = 0x800
X1_OFF = 0x1000
X2_OFF = 0x40000
NEQ = "bitop3:0x7e"
def gen(stamps=False, W=6, pause=4, bar=1, ldf="nt", x1s="sc1", x2s="", pf="sc1", midpoll=3, spin=0x20000,
        epstep=1, helstep=8, force=None, align=12, NW=8, helper=1, xpos=0, pout=1, x4=1, late0=0, ws=None, fav=0, amp=0):
    NL = 56 // NW
    nthr = 64 * max(NW, 5)
    k = K(256, nthr, 2816, stamps=stamps, sbase=64, align=align)
    TM1, TM2 = 0xff, 0x3ff
    W1, WD = 32, 96
    if late0:
        k(f"""
        s_and_b32 s3, s2, 7
        s_cbranch_scc1 L_nolate
        s_sleep {late0}
        L_nolate:
        """)
    k.stamp(0)
    if amp: k("s_memrealtime s[90:91]")
    k(f"""
    s_load_dwordx8 s[8:15], s[0:1], 0
    s_load_dwordx2 s[18:19], s[0:1], 48
    v_readfirstlane_b32 s24, v0
    s_cmp_ge_u32 s2, 224
    s_cbranch_scc1 L_cons
    s_cmpk_lt_u32 s24, 256
    s_cselect_b64 exec, -1, 0
    s_cbranch_execz {'L_t1' if helper else 'L_end'}
    s_and_b32 s20, s2, 7
    s_lshr_b32 s21, s2, 3
    v_and_b32 v5, 7, v0
    v_and_b32 v6, 8, v0
    s_lshr_b32 s25, s24, 7
    s_add_u32 s22, s21, s25
    s_cmp_eq_u32 s22, 28
    s_cselect_b32 s22, 0, s22
    s_and_b32 s26, s24, 64
    v_and_b32 v1, 32, v0
    v_lshl_add_u32 v1, v6, 1, v1
    v_bfe_u32 v2, v0, 4, 1
    v_add_u32 v1, v1, v2
    s_mul_i32 s3, s20, {128*7168}
    s_lshl_b32 s4, s22, 8
    s_add_u32 s3, s3, s4
    s_lshl_b32 s4, s26, 1
    s_add_u32 s3, s3, s4
    v_mul_u32_u24 v1, 7168, v1
    v_lshl_add_u32 v1, v5, 4, v1
    v_add_u32 v1, s3, v1
    s_lshl_b32 s35, s20, 8
    v_and_b32 v3, 56, v0
    v_lshl_add_u32 v3, v3, 2, s35
    s_movk_i32 s6, 14336
    s_cmp_eq_u32 s25, 0
    s_waitcnt lgkmcnt(0)
    s_cselect_b32 s10, s10, s12
    s_cselect_b32 s11, s11, s13
    """)
    k.stamp(1)
    seq = []
    def vm(name, text):
        seq.append(name); k(text)
    def wait_for(name):
        n = len(seq) - 1 - seq.index(name)
        k(f"s_waitcnt vmcnt({n})")
    def xloads():
        vm("x0", "global_load_dwordx4 v[8:11], v3, s[8:9]")
        vm("x1", "global_load_dwordx4 v[12:15], v3, s[8:9] offset:16")
    def issue(n):
        if n == xpos: xloads()
        if n < 16:
            base = "s[10:11]" if n % 2 == 0 else "s[12:13]"
            vm(n, f"global_load_dwordx4 v[{W1+4*n}:{W1+4*n+3}], v1, {base} {ldf}")
            if n == 0:
                k(f"s_add_u32 s12, s10, {64*7168}\ns_addc_u32 s13, s11, 0")
            if n % 2 == 1 and n < 15:
                k("v_add_u32 v1, s6, v1")
        else:
            kk = n - 16
            t = kk if x4 else (2 * kk if kk < 4 else 2 * (kk - 4) + 1)
            vm(n, f"global_load_dwordx4 v[{WD+4*t}:{WD+4*t+3}], v2, s[14:15] offset:{-4096 if kk % 2 == 0 else 0} {ldf}")
            if kk % 2 == 1 and kk < 7:
                k("v_add_u32 v2, s7, v2")
    gate = [n - W if n < 16 + pause else 99 for n in range(24)]
    if ws is not None:
        w0 = int(ws[1], 16); skips = [int(c, 16) for c in ws[2:]]
        gate = [-1] * w0
        for i in range(16):
            if i not in skips and len(gate) < 24: gate.append(i)
        gate += [99] * (24 - len(gate))
    nxt = 0
    while gate[nxt] < 0:
        issue(nxt); nxt += 1
    lbl = [0]
    def gated_issue(i):
        nonlocal nxt
        if gate[nxt] > i:
            lbl[0] += 1
            k(f"s_cbranch_scc1 L_g{lbl[0]}")
            wait_for(gate[nxt])
            k(f"L_g{lbl[0]}:")
        issue(nxt); nxt += 1
    k(f"""
    s_load_dword s23, s[18:19], 0
    s_lshl_b32 s3, s21, 8
    s_add_u32 s27, s3, s24
    s_lshl_b32 s3, s27, 10
    s_add_u32 s3, s3, s35
    s_addk_i32 s3, 4096
    v_and_b32 v7, 32, v0
    v_and_b32 v16, 15, v0
    v_lshl_add_u32 v2, v2, {7 if x4 else 1}, v7
    v_lshlrev_b32 v2, {6 if x4 else 10}, v2
    v_lshl_add_u32 v2, v16, 4, v2
    v_add_u32 v2, s3, v2
    s_movk_i32 s7, {16384 if x4 else 8192}
    v_bfe_i32 v29, v0, 2, 1
    v_and_b32 v17, 3, v0
    v_lshlrev_b32 v31, 16, v29
    v_lshrrev_b32 v29, 16, v29
    v_xor_b32 v28, 0xffff, v29
    v_lshlrev_b32 v30, 16, v28
    v_mul_u32_u24 v4, 0x5555, v17
    s_lshl_b32 s3, s22, 1
    s_add_u32 s3, s3, s25
    s_lshl_b32 s3, s3, 3
    s_add_u32 s3, s3, s20
    s_lshl_b32 s3, s3, 7
    s_add_u32 s3, s3, s26
    s_lshl_b32 s3, s3, 2
    s_addk_i32 s3, {X1_OFF}
    v_and_b32 v19, 16, v0
    v_lshl_add_u32 v20, v5, 5, v19
    v_add_u32 v20, s3, v20
    s_lshl_b32 s3, s21, 12
    s_add_u32 s3, s3, s24
    s_lshl_b32 s3, s3, 1
    s_addk_i32 s3, {X1_OFF + (2048 if x4 else 0)}
    v_and_b32 v21, {56 if x4 else 31}, v0
    v_lshl_add_u32 v21, {"v21, 2, v5" if x4 else "v7, 5, v21"}
    v_lshl_add_u32 v21, v21, {4 if x4 else 2}, s3
    s_add_u32 s3, s20, {X2_OFF >> 16}
    s_lshl_b32 s3, s3, 15
    s_add_u32 s3, s3, s27
    s_lshl_b32 s3, s3, 1
    v_and_b32 v7, 12, v0
    v_lshlrev_b32 v22, 12, v7
    v_lshl_add_u32 v17, v17, 5, v19
    v_add3_u32 v22, v22, v17, s3
    s_lshl_b32 s3, s20, 7
    v_lshl_add_u32 v7, v7, 3, s3
    s_getreg_b32 s33, hwreg(HW_REG_XCC_ID, 0, 4)
    s_movk_i32 s29, {hex(0xffff ^ TM1)}
    s_movk_i32 s32, {hex(0xffff ^ TM2)}
    v_mov_b32 v24, 0
    v_mov_b32 v25, 0
    v_mov_b32 v26, 0
    v_mov_b32 v27, 0
    """)
    k.stamp(2)
    if fav:
        k("s_cmp_eq_u32 s20, 0")
        while gate[nxt] - fav < 0: gated_issue(-1)
    for i in range(16):
        if i % 2 == 1:
            if i == 1 and seq.index("x1") > seq.index(0): wait_for("x1")
            for d in range(4):
                k(f"v_and_b32 v{16+d}, v{8+i//2}, v{28+d}")
        todo = nxt < 24 and gate[nxt] - fav <= i
        if todo or i % 2 == 1 or i == 0:
            wait_for(i)
        did = False
        while nxt < 24 and gate[nxt] - fav <= i:
            gated_issue(i); did = True
        if i == epstep:
            vm("ep", f"global_load_dword v5, v7, s[18:19] offset:{EP_OFF}"); did = True
        if i == helstep:
            vm("hel", f"global_load_dword v6, v7, s[18:19] offset:{HL_OFF} {pf}"); did = True
        if i % 2 == 1:
            if not did: k("s_nop 0")
            k(f"v_smfmac_f32_16x16x64_bf16 v[24:27], v[16:19], v[{W1+4*i-4}:{W1+4*i+3}], v4")
    assert seq.index("hel") < seq.index(15) and seq.index("ep") < seq.index(15)
    k.stamp(3)
    k(f"""
    s_waitcnt lgkmcnt(0)
    s_add_u32 s23, s23, 1
    s_and_b32 s4, s23, 63
    s_addk_i32 s4, 0x60
    v_mov_b32 v23, s4
    v_add_u32 v5, 1, v5
    v_lshl_or_b32 v3, v5, 4, s33
    v_cmp_ne_u32 s[36:37], v3, v6
    """)
    for r in range(4):
        k(f"v_permlane32_swap_b32 v{24+r}, v{16+r}")
    for r in range(4):
        k(f"v_add_f32_dpp v{8+r}, v{16+r}, v{24+r} row_ror:8 row_mask:0xf bank_mask:0xf")
    k("s_mov_b64 exec, 0x00ff00ff")
    for r in range(4):
        k(f"v_and_or_b32 v{8+r}, v{8+r}, s29, v23")
    vm("x1st", f"global_store_dwordx4 v20, v[8:11], s[18:19] {x1s}")
    k("s_mov_b64 exec, -1")
    k.stamp(4)
    if bar: k("s_barrier")
    while nxt < 24:
        issue(nxt); nxt += 1
    k(f"""
    s_mov_b32 s5, {spin}
    v_and_b32 v5, 0xff, v5
    v_add_u32 v5, 0x180, v5
    v_mov_b32 v24, 0
    v_mov_b32 v25, 0
    v_mov_b32 v26, 0
    v_mov_b32 v27, 0
    """)
    wait_for(24 - midpoll)
    if stamps: k.stamp(2)
    k("L_p1:")
    if not x4:
        for p in range(8):
            k(f"global_load_dword v{32+p}, v21, s[18:19] offset:{512*p} {pf}")
        k(f"""
        s_sub_u32 s5, s5, 1
        s_cbranch_scc1 L_end
        s_waitcnt vmcnt(4)
        v_pk_add_f32 v[48:49], v[32:33], v[34:35]
        v_bitop3_b32 v52, v32, v33, v23 {NEQ}
        v_bitop3_b32 v53, v34, v35, v23 {NEQ}
        s_waitcnt vmcnt(0)
        """)
        k.stamp(5)
        k(f"""
        v_pk_add_f32 v[50:51], v[36:37], v[38:39]
        v_pk_add_f32 v[48:49], v[48:49], v[50:51]
        v_add_f32 v48, v48, v49
        v_cvt_pk_bf16_f32 v48, 0, v48
        v_bitop3_b32 v54, v36, v37, v23 {NEQ}
        v_bitop3_b32 v55, v38, v39, v23 {NEQ}
        v_mov_b32_dpp v51, v48 row_ror:8 row_mask:0xf bank_mask:0xf
        v_or3_b32 v52, v52, v53, v54
        v_bitop3_b32 v52, v52, v55, s29 bitop3:0x54
        v_permlane32_swap_b32 v48, v51
        v_mul_f32 v50, 0xbfb8aa3b, v48
        v_exp_f32 v50, v50
        v_cmp_ne_u32 vcc, 0, v52
        v_add_f32 v50, 1.0, v50
        v_rcp_f32 v50, v50
        s_cbranch_vccnz L_p1
        v_mul_f32 v49, v48, v50
        v_cvt_pk_bf16_f32 v49, 0, v49
        v_mul_f32 v49, v51, v49
        v_cvt_pk_bf16_f32 v49, v49, v49
        s_cmp_lg_u64 s[36:37], 0
        s_nop 0
        """)
    else:
        k(f"""
        global_load_dwordx4 v[32:35], v21, s[18:19] offset:-2048 {pf}
        global_load_dwordx4 v[36:39], v21, s[18:19] offset:2048 {pf}
        s_sub_u32 s5, s5, 1
        s_cbranch_scc1 L_end
        s_waitcnt vmcnt(1)
        v_permlane32_swap_b32 v32, v34
        v_permlane32_swap_b32 v33, v35
        v_pk_add_f32 v[48:49], v[32:33], v[34:35]
        s_waitcnt vmcnt(0)
        """)
        k.stamp(5)
        k(f"""
        v_permlane32_swap_b32 v36, v38
        v_permlane16_swap_b32 v48, v49
        v_add_f32 v48, v48, v49
        v_permlane32_swap_b32 v37, v39
        v_pk_add_f32 v[50:51], v[36:37], v[38:39]
        v_add_f32_dpp v48, v48, v48 row_ror:8 row_mask:0xf bank_mask:0xf
        v_cvt_pk_bf16_f32 v48, 0, v48
        v_mul_f32 v56, 0xbfb8aa3b, v48
        v_exp_f32 v56, v56
        v_permlane16_swap_b32 v50, v51
        v_add_f32 v56, 1.0, v56
        v_rcp_f32 v56, v56
        v_add_f32 v50, v50, v51
        v_mul_f32 v49, v48, v56
        v_cvt_pk_bf16_f32 v49, 0, v49
        v_add_f32_dpp v50, v50, v50 row_ror:8 row_mask:0xf bank_mask:0xf
        v_cvt_pk_bf16_f32 v50, 0, v50
        v_mul_f32 v49, v50, v49
        v_cvt_pk_bf16_f32 v49, v49, v49
        v_bitop3_b32 v52, v32, v33, v23 {NEQ}
        v_bitop3_b32 v53, v34, v35, v23 {NEQ}
        """)
    k.stamp(6)
    def sm(n): k(f"v_smfmac_f32_16x16x64_bf16 v[24:27], v[{56+4*n}:{59+4*n}], v[{WD+8*n}:{WD+8*n+7}], v4")
    for n in range(4):
        for d in range(4):
            k(f"v_and_b32_dpp v{56+4*n+d}, v49, v{28+(d&1)} row_newbcast:{2*n+(d>>1)} row_mask:0xf bank_mask:0xf")
            if n > 0 and d == 1: sm(n - 1)
    if x4:
        k(f"v_bitop3_b32 v54, v36, v37, v23 {NEQ}")
        k(f"v_bitop3_b32 v55, v38, v39, v23 {NEQ}")
    else:
        k("s_nop 1")
    sm(3)
    if x4:
        k("""
        v_or3_b32 v52, v52, v53, v54
        v_bitop3_b32 v52, v52, v55, s29 bitop3:0x54
        v_cmp_ne_u32 vcc, 0, v52
        s_cmp_lg_u64 s[36:37], 0
        s_cbranch_vccnz L_retry
        """)
    if stamps:
        k("s_mov_b32 s84, s5")
        k("s_mov_b32 s86, s36")
    if force == "mix":
        k("s_bitcmp1_b32 s21, 0")
    if force == "slow":
        k("s_cmp_eq_u32 s21, s21")
    k(f"""
    s_mov_b32 exec_hi, 0
    s_cbranch_scc1 L_slow
    s_nop {0 if x4 else 5}
    """)
    for r in range(4):
        k(f"v_and_or_b32 v{24+r}, v{24+r}, s32, v5")
    k(f"global_store_dwordx4 v22, v[24:27], s[18:19] {x2s}")
    if stamps:
        k.stamp(7)
        k("s_branch L_fin")
    else:
        k("s_endpgm")
    if x4:
        k("""
        L_retry:
        s_nop 3
        v_mov_b32 v24, 0
        v_mov_b32 v25, 0
        v_mov_b32 v26, 0
        v_mov_b32 v27, 0
        s_branch L_p1
        """)
    k("L_slow:")
    k("s_nop 5")
    for r in range(4):
        k(f"v_and_or_b32 v{24+r}, v{24+r}, s32, v5")
    k("global_store_dwordx4 v22, v[24:27], s[18:19] sc1")
    if stamps:
        k.stamp(7)
        k("s_branch L_fin")
    else:
        k("L_end:")
        k("s_endpgm")
    k(f"""
    L_cons:
    s_cmpk_ge_u32 s2, 256
    s_cbranch_scc1 L_end
    """)
    if nthr > 64 * NW:
        k(f"s_cmpk_ge_u32 s24, {64*NW}\ns_cbranch_scc1 L_end")
    k(f"""
    s_load_dwordx2 s[16:17], s[0:1], 32
    s_and_b32 s20, s2, 7
    s_lshl_b32 s20, s20, 5
    s_and_b32 s21, s2, 24
    s_add_u32 s20, s20, s21
    s_lshl_b32 s22, s20, 2
    s_add_u32 s25, s22, {EP_OFF}
    v_and_b32 v3, 63, v0
    v_lshlrev_b32 v8, 2, v3
    v_and_b32 v7, 31, v0
    v_mul_u32_u24 v9, 80, v7
    v_lshrrev_b32 v14, 5, v0
    v_lshl_add_u32 v14, v14, 2, v9
    v_mov_b32 v10, 0
    ds_write_b32 v8, v10 offset:2560
    s_waitcnt lgkmcnt(0)
    s_load_dword s23, s[18:19], s25
    s_load_dword s26, s[18:19], 0
    s_lshl_b32 s4, s20, 3
    v_lshl_add_u32 v7, v7, 1, s4
    s_lshl_b32 s4, s20, 11
    s_mul_i32 s3, s24, {4*NL}
    s_add_u32 s4, s4, s3
    s_add_u32 s4, s4, {X2_OFF}
    v_add_u32 v1, s4, v8
    s_getreg_b32 s33, hwreg(HW_REG_XCC_ID, 0, 4)
    s_movk_i32 s32, {hex(0xffff ^ TM2)}
    v_mov_b32 v4, s22
    v_mov_b32 v10, 1
    s_mov_b32 s5, {spin}
    s_waitcnt lgkmcnt(0)
    s_add_u32 s23, s23, 1
    s_add_u32 s26, s26, 1
    s_lshl_b32 s4, s23, 4
    s_or_b32 s33, s33, s4
    v_mov_b32 v5, s33
    global_store_dword v4, v5, s[18:19] offset:{HL_OFF}
    s_and_b32 s4, s23, 255
    s_addk_i32 s4, 0x180
    v_mov_b32 v2, s4
    v_mov_b32 v6, s23
    v_mov_b32 v11, s26
    {"global_load_ushort v15, v7, s[16:17]" if pout else ""}
    """)
    if amp:
        k("""
        s_and_b32 s4, s2, 31
        s_lshl_b32 s4, s4, 7
        s_add_u32 s4, s4, 0x200000
        v_mov_b32 v16, s4
        v_mov_b32 v17, s90
        global_store_dword v16, v17, s[18:19] sc1
        v_and_b32 v16, 31, v0
        v_lshlrev_b32 v16, 7, v16
        v_add_u32 v16, 0x200000, v16
        """)
    k("""
    s_barrier
    L_p2:
    """)
    for i in range(NL):
        k(f"global_load_dword v{32+i}, v1, s[18:19] offset:{256*i} {pf}")
    k(f"""
    s_sub_u32 s5, s5, 1
    s_cbranch_scc1 L_end
    s_waitcnt vmcnt(0)
    """)
    regs = [32 + i for i in range(NL)]
    chk = []
    for i in range(0, NL, 2):
        b = regs[i + 1] if i + 1 < NL else regs[i]
        k(f"v_bitop3_b32 v{52+i//2}, v{regs[i]}, v{b}, v2 {NEQ}")
        chk.append(52 + i // 2)
    while len(chk) > 2:
        k(f"v_or3_b32 v{chk[0]}, v{chk[0]}, v{chk[1]}, v{chk[2]}")
        chk = [chk[0]] + chk[3:]
    k(f"v_bitop3_b32 v52, v{chk[0]}, v{chk[-1]}, s32 bitop3:0x54")
    k("v_cmp_ne_u32 vcc, 0, v52")
    def sumlist(regs):
        ops = []
        pairs = [regs[i] for i in range(0, len(regs) - 1, 2)]
        odd = regs[-1] if len(regs) % 2 else None
        while len(pairs) > 1:
            nx = []
            for i in range(0, len(pairs) - 1, 2):
                p, q = pairs[i], pairs[i + 1]
                ops.append(f"v_pk_add_f32 v[{p}:{p+1}], v[{p}:{p+1}], v[{q}:{q+1}]"); nx.append(p)
            if len(pairs) % 2: nx.append(pairs[-1])
            pairs = nx
        if odd is not None: ops.append(f"v_add_f32 v{regs[0]}, v{regs[0]}, v{odd}")
        ops.append(f"v_add_f32 v{regs[0]}, v{regs[0]}, v{regs[0]+1}")
        return ops
    adds = sumlist(regs)
    for a_ in adds[:2]: k(a_)
    k("s_cbranch_vccnz L_p2")
    for a_ in adds[2:]: k(a_)
    k.stamp(8)
    k(f"""
    ds_write_b32 v14, v32
    s_mov_b32 exec_hi, 0
    ds_add_rtn_u32 v12, v8, v10 offset:2560
    """)
    ns = 2 * NW
    nrd = 0
    for i in range(0, ns, 4):
        if ns - i >= 4: k(f"ds_read_b128 v[{64+i}:{67+i}], v9 offset:{4*i}")
        else: k(f"ds_read_b64 v[{64+i}:{65+i}], v9 offset:{4*i}")
        nrd += 1
    k(f"""
    s_cmp_lg_u32 s20, 0
    s_waitcnt lgkmcnt({nrd})
    v_cmpx_eq_u32 vcc, {NW-1}, v12
    s_cbranch_vccz L_fin
    s_waitcnt lgkmcnt(0)
    """)
    for a_ in sumlist([64 + i for i in range(ns)]): k(a_)
    k(f"""
    v_cvt_pk_bf16_f32 v13, v64, v64
    global_store_short v7, v13, s[16:17]
    global_store_dword v4, v6, s[18:19] offset:{EP_OFF}
    s_cbranch_scc1 L_fin2
    global_store_dword v4, v11, s[18:19]
    L_fin2:
    """)
    if amp:
        k(f"""
        s_waitcnt vmcnt(0)
        s_memrealtime s[92:93]
        global_load_dword v17, v16, s[18:19] sc1
        s_waitcnt vmcnt(0) lgkmcnt(0)
        v_sub_u32 v17, s92, v17
        s_mov_b32 s4, 0
        """)
        for i in range(32):
            if i % 8 == 0: continue
            k(f"v_readlane_b32 s5, v17, {i}")
            k("s_add_u32 s4, s4, s5")
        k(f"""
        s_min_u32 s4, s4, 42000
        s_mul_i32 s4, s4, {int(amp*65536/28)}
        s_lshr_b32 s4, s4, 16
        L_spin:
        s_sleep 1
        s_memrealtime s[6:7]
        s_waitcnt lgkmcnt(0)
        s_sub_u32 s5, s6, s92
        s_cmp_lt_u32 s5, s4
        s_cbranch_scc1 L_spin
        """)
    k("L_fin:")
    if stamps:
        k("s_mov_b64 exec, -1")
        k("s_waitcnt vmcnt(0)")
        k.stamp(9)
        k.dump_stamps(18, n=12, vtmp=40)
        k("L_end:")
    text = k.finish(128, 96)
    text = add_touch_points(text, limit="L_cons")
    return text.replace("L_cons:", f".org {NAME}_kernel + 2176\nL_cons:")

from gen4 import parse
if __name__ == "__main__":
    names = []
    for spec in sys.argv[1:]:
        nm = "v7_" + spec.replace(",", "_").replace("=", "").replace("+", "") + ".s"
        open(nm, "w").write(gen(**parse(spec)))
        names.append(nm)
    print(" ".join(names))
```

```python
import sys
from kcommon import *
EP_OFF = 0x400
HL_OFF = 0x800
X1_OFF = 0x1000
X2_OFF = 0x40000
NEQ = "bitop3:0x7e"
def gen(stamps=False, W=6, pause=4, bar=1, ldf="nt", x1s="sc1", x2s="", pf="sc1", midpoll=3, spin=0x20000,
        epstep=1, helstep=16, force=None, align=12, NW=8, helper=1, xpos=0, pout=1, x4=1, late0=0, ws=None, fav=0, amp=0):
    NL = 56 // NW
    nthr = 64 * max(NW, 5)
    k = K(256, nthr, 2816, stamps=stamps, sbase=64, align=align)
    TM1, TM2 = 0xff, 0x3ff
    W1, WD = 32, 96
    if late0:
        k(f"""
        s_and_b32 s3, s2, 7
        s_cbranch_scc1 L_nolate
        s_sleep {late0}
        L_nolate:
        """)
    k.stamp(0)
    if amp: k("s_memrealtime s[90:91]")
    k(f"""
    s_load_dwordx8 s[8:15], s[0:1], 0
    s_load_dwordx2 s[18:19], s[0:1], 48
    v_readfirstlane_b32 s24, v0
    s_cmp_ge_u32 s2, 224
    s_cbranch_scc1 L_cons
    s_cmpk_lt_u32 s24, 256
    s_cselect_b64 exec, -1, 0
    s_cbranch_execz {'L_t1' if helper else 'L_end'}
    s_and_b32 s20, s2, 7
    s_lshr_b32 s21, s2, 3
    v_and_b32 v5, 7, v0
    v_and_b32 v6, 8, v0
    s_lshr_b32 s25, s24, 7
    s_add_u32 s22, s21, s25
    s_cmp_eq_u32 s22, 28
    s_cselect_b32 s22, 0, s22
    s_and_b32 s26, s24, 64
    v_and_b32 v1, 32, v0
    v_lshl_add_u32 v1, v6, 1, v1
    v_bfe_u32 v2, v0, 4, 1
    v_add_u32 v1, v1, v2
    s_mul_i32 s3, s20, {128*7168}
    s_lshl_b32 s4, s22, 8
    s_add_u32 s3, s3, s4
    s_lshl_b32 s4, s26, 1
    s_add_u32 s3, s3, s4
    v_mul_u32_u24 v1, 7168, v1
    v_lshl_add_u32 v1, v5, 4, v1
    v_add_u32 v1, s3, v1
    s_lshl_b32 s35, s20, 8
    v_and_b32 v3, 56, v0
    v_lshl_add_u32 v3, v3, 2, s35
    s_movk_i32 s6, 14336
    s_cmp_eq_u32 s25, 0
    s_waitcnt lgkmcnt(0)
    s_cselect_b32 s10, s10, s12
    s_cselect_b32 s11, s11, s13
    """)
    k.stamp(1)
    seq = []
    def vm(name, text):
        seq.append(name); k(text)
    def wait_for(name):
        n = len(seq) - 1 - seq.index(name)
        k(f"s_waitcnt vmcnt({n})")
    def xloads():
        vm("x0", "global_load_dwordx4 v[8:11], v3, s[8:9]")
        vm("x1", "global_load_dwordx4 v[12:15], v3, s[8:9] offset:16")
    def issue(n):
        if n == xpos: xloads()
        if n < 16:
            base = "s[10:11]" if n % 2 == 0 else "s[12:13]"
            vm(n, f"global_load_dwordx4 v[{W1+4*n}:{W1+4*n+3}], v1, {base} {ldf}")
            if n == 0:
                k(f"s_add_u32 s12, s10, {64*7168}\ns_addc_u32 s13, s11, 0")
            if n % 2 == 1 and n < 15:
                k("v_add_u32 v1, s6, v1")
        else:
            kk = n - 16
            t = kk if x4 else (2 * kk if kk < 4 else 2 * (kk - 4) + 1)
            vm(n, f"global_load_dwordx4 v[{WD+4*t}:{WD+4*t+3}], v2, s[14:15] offset:{-4096 if kk % 2 == 0 else 0} {ldf}")
            if kk % 2 == 1 and kk < 7:
                k("v_add_u32 v2, s7, v2")
    gate = [n - W if n < 16 + pause else 99 for n in range(24)]
    if ws is not None:
        w0 = int(ws[1], 16); skips = [int(c, 16) for c in ws[2:]]
        gate = [-1] * w0
        for i in range(16):
            if i not in skips and len(gate) < 24: gate.append(i)
        gate += [99] * (24 - len(gate))
    nxt = 0
    while gate[nxt] < 0:
        issue(nxt); nxt += 1
    lbl = [0]
    def gated_issue(i):
        nonlocal nxt
        if gate[nxt] > i:
            lbl[0] += 1
            k(f"s_cbranch_scc1 L_g{lbl[0]}")
            wait_for(gate[nxt])
            k(f"L_g{lbl[0]}:")
        issue(nxt); nxt += 1
    k(f"""
    s_load_dword s23, s[18:19], 0
    s_lshl_b32 s3, s21, 8
    s_add_u32 s27, s3, s24
    s_lshl_b32 s3, s27, 10
    s_add_u32 s3, s3, s35
    s_addk_i32 s3, 4096
    v_and_b32 v7, 32, v0
    v_and_b32 v16, 15, v0
    v_lshl_add_u32 v2, v2, {7 if x4 else 1}, v7
    v_lshlrev_b32 v2, {6 if x4 else 10}, v2
    v_lshl_add_u32 v2, v16, 4, v2
    v_add_u32 v2, s3, v2
    s_movk_i32 s7, {16384 if x4 else 8192}
    v_bfe_i32 v29, v0, 2, 1
    v_and_b32 v17, 3, v0
    v_lshlrev_b32 v31, 16, v29
    v_lshrrev_b32 v29, 16, v29
    v_xor_b32 v28, 0xffff, v29
    v_lshlrev_b32 v30, 16, v28
    v_mul_u32_u24 v4, 0x5555, v17
    s_lshl_b32 s3, s22, 1
    s_add_u32 s3, s3, s25
    s_lshl_b32 s3, s3, 3
    s_add_u32 s3, s3, s20
    s_lshl_b32 s3, s3, 7
    s_add_u32 s3, s3, s26
    s_lshl_b32 s3, s3, 2
    s_addk_i32 s3, {X1_OFF}
    v_and_b32 v19, 16, v0
    v_lshl_add_u32 v20, v5, 5, v19
    v_add_u32 v20, s3, v20
    s_lshl_b32 s3, s21, 12
    s_add_u32 s3, s3, s24
    s_lshl_b32 s3, s3, 1
    s_addk_i32 s3, {X1_OFF + (2048 if x4 else 0)}
    v_and_b32 v21, {56 if x4 else 31}, v0
    v_lshl_add_u32 v21, {"v21, 2, v5" if x4 else "v7, 5, v21"}
    v_lshl_add_u32 v21, v21, {4 if x4 else 2}, s3
    s_add_u32 s3, s20, {X2_OFF >> 16}
    s_lshl_b32 s3, s3, 15
    s_add_u32 s3, s3, s27
    s_lshl_b32 s3, s3, 1
    v_and_b32 v7, 12, v0
    v_lshlrev_b32 v22, 12, v7
    v_lshl_add_u32 v17, v17, 5, v19
    v_add3_u32 v22, v22, v17, s3
    s_lshl_b32 s3, s20, 7
    v_lshl_add_u32 v7, v7, 3, s3
    s_getreg_b32 s33, hwreg(HW_REG_XCC_ID, 0, 4)
    s_movk_i32 s29, {hex(0xffff ^ TM1)}
    s_movk_i32 s32, {hex(0xffff ^ TM2)}
    v_mov_b32 v24, 0
    v_mov_b32 v25, 0
    v_mov_b32 v26, 0
    v_mov_b32 v27, 0
    """)
    k.stamp(2)
    if fav:
        k("s_cmp_eq_u32 s20, 0")
        while gate[nxt] - fav < 0: gated_issue(-1)
    for i in range(16):
        if i % 2 == 1:
            if i == 1 and seq.index("x1") > seq.index(0): wait_for("x1")
            for d in range(4):
                k(f"v_and_b32 v{16+d}, v{8+i//2}, v{28+d}")
        todo = nxt < 24 and gate[nxt] - fav <= i
        if todo or i % 2 == 1 or i == 0:
            wait_for(i)
        did = False
        while nxt < 24 and gate[nxt] - fav <= i:
            gated_issue(i); did = True
        if i == epstep:
            vm("ep", f"global_load_dword v5, v7, s[18:19] offset:{EP_OFF}"); did = True
        if i == helstep:
            vm("hel", f"global_load_dword v6, v7, s[18:19] offset:{HL_OFF} {pf}"); did = True
        if i % 2 == 1:
            if not did: k("s_nop 0")
            k(f"v_smfmac_f32_16x16x64_bf16 v[24:27], v[16:19], v[{W1+4*i-4}:{W1+4*i+3}], v4")
    assert (helstep == 16 or seq.index("hel") < seq.index(15)) and seq.index("ep") < seq.index(15)
    k.stamp(3)
    k(f"""
    s_waitcnt lgkmcnt(0)
    s_add_u32 s23, s23, 1
    s_and_b32 s4, s23, 63
    s_addk_i32 s4, 0x60
    v_mov_b32 v23, s4
    v_add_u32 v5, 1, v5
    v_lshl_or_b32 v3, v5, 4, s33
    {"v_cmp_ne_u32 s[36:37], v3, v6" if helstep < 16 else "s_nop 0"}
    """)
    for r in range(4):
        k(f"v_permlane32_swap_b32 v{24+r}, v{16+r}")
    for r in range(4):
        k(f"v_add_f32_dpp v{8+r}, v{16+r}, v{24+r} row_ror:8 row_mask:0xf bank_mask:0xf")
    k("s_mov_b64 exec, 0x00ff00ff")
    for r in range(4):
        k(f"v_and_or_b32 v{8+r}, v{8+r}, s29, v23")
    vm("x1st", f"global_store_dwordx4 v20, v[8:11], s[18:19] {x1s}")
    k("s_mov_b64 exec, -1")
    k.stamp(4)
    if bar: k("s_barrier")
    if helstep == 16:
        vm("hel", f"global_load_dword v6, v7, s[18:19] offset:{HL_OFF} {pf}")
    while nxt < 24:
        issue(nxt); nxt += 1
    k(f"""
    s_mov_b32 s5, {spin}
    v_and_b32 v5, 0xff, v5
    v_add_u32 v5, 0x180, v5
    v_mov_b32 v24, 0
    v_mov_b32 v25, 0
    v_mov_b32 v26, 0
    v_mov_b32 v27, 0
    """)
    wait_for(24 - midpoll)
    if stamps: k.stamp(2)
    k("L_p1:")
    if not x4:
        for p in range(8):
            k(f"global_load_dword v{32+p}, v21, s[18:19] offset:{512*p} {pf}")
        k(f"""
        s_sub_u32 s5, s5, 1
        s_cbranch_scc1 L_end
        s_waitcnt vmcnt(4)
        v_pk_add_f32 v[48:49], v[32:33], v[34:35]
        v_bitop3_b32 v52, v32, v33, v23 {NEQ}
        v_bitop3_b32 v53, v34, v35, v23 {NEQ}
        s_waitcnt vmcnt(0)
        """)
        k.stamp(5)
        k(f"""
        v_pk_add_f32 v[50:51], v[36:37], v[38:39]
        v_pk_add_f32 v[48:49], v[48:49], v[50:51]
        v_add_f32 v48, v48, v49
        v_cvt_pk_bf16_f32 v48, 0, v48
        v_bitop3_b32 v54, v36, v37, v23 {NEQ}
        v_bitop3_b32 v55, v38, v39, v23 {NEQ}
        v_mov_b32_dpp v51, v48 row_ror:8 row_mask:0xf bank_mask:0xf
        v_or3_b32 v52, v52, v53, v54
        v_bitop3_b32 v52, v52, v55, s29 bitop3:0x54
        v_permlane32_swap_b32 v48, v51
        v_mul_f32 v50, 0xbfb8aa3b, v48
        v_exp_f32 v50, v50
        v_cmp_ne_u32 vcc, 0, v52
        v_add_f32 v50, 1.0, v50
        v_rcp_f32 v50, v50
        s_cbranch_vccnz L_p1
        v_mul_f32 v49, v48, v50
        v_cvt_pk_bf16_f32 v49, 0, v49
        v_mul_f32 v49, v51, v49
        v_cvt_pk_bf16_f32 v49, v49, v49
        s_cmp_lg_u64 s[36:37], 0
        s_nop 0
        """)
    else:
        k(f"""
        global_load_dwordx4 v[32:35], v21, s[18:19] offset:-2048 {pf}
        global_load_dwordx4 v[36:39], v21, s[18:19] offset:2048 {pf}
        s_sub_u32 s5, s5, 1
        s_cbranch_scc1 L_end
        {"s_waitcnt vmcnt(2)" if helstep == 16 and seq.index("hel") > seq.index(24 - midpoll) else ""}
        {"v_cmp_ne_u32 s[36:37], v3, v6" if helstep == 16 else ""}
        s_waitcnt vmcnt(1)
        v_permlane32_swap_b32 v32, v34
        v_permlane32_swap_b32 v33, v35
        v_pk_add_f32 v[48:49], v[32:33], v[34:35]
        s_waitcnt vmcnt(0)
        """)
        k.stamp(5)
        k(f"""
        v_permlane32_swap_b32 v36, v38
        v_permlane16_swap_b32 v48, v49
        v_add_f32 v48, v48, v49
        v_permlane32_swap_b32 v37, v39
        v_pk_add_f32 v[50:51], v[36:37], v[38:39]
        v_add_f32_dpp v48, v48, v48 row_ror:8 row_mask:0xf bank_mask:0xf
        v_cvt_pk_bf16_f32 v48, 0, v48
        v_mul_f32 v56, 0xbfb8aa3b, v48
        v_exp_f32 v56, v56
        v_permlane16_swap_b32 v50, v51
        v_add_f32 v56, 1.0, v56
        v_rcp_f32 v56, v56
        v_add_f32 v50, v50, v51
        v_mul_f32 v49, v48, v56
        v_cvt_pk_bf16_f32 v49, 0, v49
        v_add_f32_dpp v50, v50, v50 row_ror:8 row_mask:0xf bank_mask:0xf
        v_cvt_pk_bf16_f32 v50, 0, v50
        v_mul_f32 v49, v50, v49
        v_cvt_pk_bf16_f32 v49, v49, v49
        v_bitop3_b32 v52, v32, v33, v23 {NEQ}
        v_bitop3_b32 v53, v34, v35, v23 {NEQ}
        """)
    k.stamp(6)
    def sm(n): k(f"v_smfmac_f32_16x16x64_bf16 v[24:27], v[{56+4*n}:{59+4*n}], v[{WD+8*n}:{WD+8*n+7}], v4")
    for n in range(4):
        for d in range(4):
            k(f"v_and_b32_dpp v{56+4*n+d}, v49, v{28+(d&1)} row_newbcast:{2*n+(d>>1)} row_mask:0xf bank_mask:0xf")
            if n > 0 and d == 1: sm(n - 1)
    if x4:
        k(f"v_bitop3_b32 v54, v36, v37, v23 {NEQ}")
        k(f"v_bitop3_b32 v55, v38, v39, v23 {NEQ}")
    else:
        k("s_nop 1")
    sm(3)
    if x4:
        k("""
        v_or3_b32 v52, v52, v53, v54
        v_bitop3_b32 v52, v52, v55, s29 bitop3:0x54
        v_cmp_ne_u32 vcc, 0, v52
        s_cmp_lg_u64 s[36:37], 0
        s_cbranch_vccnz L_retry
        """)
    if stamps:
        k("s_mov_b32 s84, s5")
        k("s_mov_b32 s86, s36")
    if force == "mix":
        k("s_bitcmp1_b32 s21, 0")
    if force == "slow":
        k("s_cmp_eq_u32 s21, s21")
    k(f"""
    s_mov_b32 exec_hi, 0
    s_cbranch_scc1 L_slow
    s_nop {0 if x4 else 5}
    """)
    for r in range(4):
        k(f"v_and_or_b32 v{24+r}, v{24+r}, s32, v5")
    k(f"global_store_dwordx4 v22, v[24:27], s[18:19] {x2s}")
    if stamps:
        k.stamp(7)
        k("s_branch L_fin")
    else:
        k("s_endpgm")
    if x4:
        k("""
        L_retry:
        s_nop 3
        v_mov_b32 v24, 0
        v_mov_b32 v25, 0
        v_mov_b32 v26, 0
        v_mov_b32 v27, 0
        s_branch L_p1
        """)
    k("L_slow:")
    k("s_nop 5")
    for r in range(4):
        k(f"v_and_or_b32 v{24+r}, v{24+r}, s32, v5")
    k("global_store_dwordx4 v22, v[24:27], s[18:19] sc1")
    if stamps:
        k.stamp(7)
        k("s_branch L_fin")
    else:
        k("L_end:")
        k("s_endpgm")
    k(f"""
    L_cons:
    s_cmpk_ge_u32 s2, 256
    s_cbranch_scc1 L_end
    """)
    if nthr > 64 * NW:
        k(f"s_cmpk_ge_u32 s24, {64*NW}\ns_cbranch_scc1 L_end")
    k(f"""
    s_load_dwordx2 s[16:17], s[0:1], 32
    s_and_b32 s20, s2, 7
    s_lshl_b32 s20, s20, 5
    s_and_b32 s21, s2, 24
    s_add_u32 s20, s20, s21
    s_lshl_b32 s22, s20, 2
    s_add_u32 s25, s22, {EP_OFF}
    v_and_b32 v3, 63, v0
    v_lshlrev_b32 v8, 2, v3
    v_and_b32 v7, 31, v0
    v_mul_u32_u24 v9, 80, v7
    v_lshrrev_b32 v14, 5, v0
    v_lshl_add_u32 v14, v14, 2, v9
    v_mov_b32 v10, 0
    ds_write_b32 v8, v10 offset:2560
    s_waitcnt lgkmcnt(0)
    s_load_dword s23, s[18:19], s25
    s_load_dword s26, s[18:19], 0
    s_lshl_b32 s4, s20, 3
    v_lshl_add_u32 v7, v7, 1, s4
    s_lshl_b32 s4, s20, 11
    s_mul_i32 s3, s24, {4*NL}
    s_add_u32 s4, s4, s3
    s_add_u32 s4, s4, {X2_OFF}
    v_add_u32 v1, s4, v8
    s_getreg_b32 s33, hwreg(HW_REG_XCC_ID, 0, 4)
    s_movk_i32 s32, {hex(0xffff ^ TM2)}
    v_mov_b32 v4, s22
    v_mov_b32 v10, 1
    s_mov_b32 s5, {spin}
    s_waitcnt lgkmcnt(0)
    s_add_u32 s23, s23, 1
    s_add_u32 s26, s26, 1
    s_lshl_b32 s4, s23, 4
    s_or_b32 s33, s33, s4
    v_mov_b32 v5, s33
    global_store_dword v4, v5, s[18:19] offset:{HL_OFF}
    s_and_b32 s4, s23, 255
    s_addk_i32 s4, 0x180
    v_mov_b32 v2, s4
    v_mov_b32 v6, s23
    v_mov_b32 v11, s26
    {"global_load_ushort v15, v7, s[16:17]" if pout else ""}
    """)
    if amp:
        k("""
        s_and_b32 s4, s2, 31
        s_lshl_b32 s4, s4, 7
        s_add_u32 s4, s4, 0x200000
        v_mov_b32 v16, s4
        v_mov_b32 v17, s90
        global_store_dword v16, v17, s[18:19] sc1
        v_and_b32 v16, 31, v0
        v_lshlrev_b32 v16, 7, v16
        v_add_u32 v16, 0x200000, v16
        """)
    k("""
    s_barrier
    L_p2:
    """)
    for i in range(NL):
        k(f"global_load_dword v{32+i}, v1, s[18:19] offset:{256*i} {pf}")
    k(f"""
    s_sub_u32 s5, s5, 1
    s_cbranch_scc1 L_end
    s_waitcnt vmcnt(0)
    """)
    regs = [32 + i for i in range(NL)]
    chk = []
    for i in range(0, NL, 2):
        b = regs[i + 1] if i + 1 < NL else regs[i]
        k(f"v_bitop3_b32 v{52+i//2}, v{regs[i]}, v{b}, v2 {NEQ}")
        chk.append(52 + i // 2)
    while len(chk) > 2:
        k(f"v_or3_b32 v{chk[0]}, v{chk[0]}, v{chk[1]}, v{chk[2]}")
        chk = [chk[0]] + chk[3:]
    k(f"v_bitop3_b32 v52, v{chk[0]}, v{chk[-1]}, s32 bitop3:0x54")
    k("v_cmp_ne_u32 vcc, 0, v52")
    def sumlist(regs):
        ops = []
        pairs = [regs[i] for i in range(0, len(regs) - 1, 2)]
        odd = regs[-1] if len(regs) % 2 else None
        while len(pairs) > 1:
            nx = []
            for i in range(0, len(pairs) - 1, 2):
                p, q = pairs[i], pairs[i + 1]
                ops.append(f"v_pk_add_f32 v[{p}:{p+1}], v[{p}:{p+1}], v[{q}:{q+1}]"); nx.append(p)
            if len(pairs) % 2: nx.append(pairs[-1])
            pairs = nx
        if odd is not None: ops.append(f"v_add_f32 v{regs[0]}, v{regs[0]}, v{odd}")
        ops.append(f"v_add_f32 v{regs[0]}, v{regs[0]}, v{regs[0]+1}")
        return ops
    adds = sumlist(regs)
    for a_ in adds[:2]: k(a_)
    k("s_cbranch_vccnz L_p2")
    for a_ in adds[2:]: k(a_)
    k.stamp(8)
    k(f"""
    ds_write_b32 v14, v32
    s_mov_b32 exec_hi, 0
    ds_add_rtn_u32 v12, v8, v10 offset:2560
    """)
    ns = 2 * NW
    nrd = 0
    for i in range(0, ns, 4):
        if ns - i >= 4: k(f"ds_read_b128 v[{64+i}:{67+i}], v9 offset:{4*i}")
        else: k(f"ds_read_b64 v[{64+i}:{65+i}], v9 offset:{4*i}")
        nrd += 1
    k(f"""
    s_cmp_lg_u32 s20, 0
    s_waitcnt lgkmcnt({nrd})
    v_cmpx_eq_u32 vcc, {NW-1}, v12
    s_cbranch_vccz L_fin
    s_waitcnt lgkmcnt(0)
    """)
    for a_ in sumlist([64 + i for i in range(ns)]): k(a_)
    k(f"""
    v_cvt_pk_bf16_f32 v13, v64, v64
    global_store_short v7, v13, s[16:17]
    global_store_dword v4, v6, s[18:19] offset:{EP_OFF}
    s_cbranch_scc1 L_fin2
    global_store_dword v4, v11, s[18:19]
    L_fin2:
    """)
    if amp:
        k(f"""
        s_waitcnt vmcnt(0)
        s_memrealtime s[92:93]
        global_load_dword v17, v16, s[18:19] sc1
        s_waitcnt vmcnt(0) lgkmcnt(0)
        v_sub_u32 v17, s92, v17
        s_mov_b32 s4, 0
        """)
        for i in range(32):
            if i % 8 == 0: continue
            k(f"v_readlane_b32 s5, v17, {i}")
            k("s_add_u32 s4, s4, s5")
        k(f"""
        s_min_u32 s4, s4, 42000
        s_mul_i32 s4, s4, {int(amp*65536/28)}
        s_lshr_b32 s4, s4, 16
        L_spin:
        s_sleep 1
        s_memrealtime s[6:7]
        s_waitcnt lgkmcnt(0)
        s_sub_u32 s5, s6, s92
        s_cmp_lt_u32 s5, s4
        s_cbranch_scc1 L_spin
        """)
    k("L_fin:")
    if stamps:
        k("s_mov_b64 exec, -1")
        k("s_waitcnt vmcnt(0)")
        k.stamp(9)
        k.dump_stamps(18, n=12, vtmp=40)
        k("L_end:")
    text = k.finish(128, 96)
    text = add_touch_points(text, limit="L_cons")
    return text.replace("L_cons:", f".org {NAME}_kernel + 2176\nL_cons:")

from gen4 import parse
if __name__ == "__main__":
    names = []
    for spec in sys.argv[1:]:
        nm = "v7_" + spec.replace(",", "_").replace("=", "").replace("+", "") + ".s"
        open(nm, "w").write(gen(**parse(spec)))
        names.append(nm)
    print(" ".join(names))
```

```python
import sys
from kcommon import *
EP_OFF = 0x400
HL_OFF = 0x800
X1_OFF = 0x1000
X2_OFF = 0x40000
DPP = "row_mask:0xf bank_mask:0xf"
def gen(stamps=False, W=6, pause=4, bar=1, ldf="nt", x1s="sc1", x2s="", pf="sc1", midpoll=4, spin=0x200000,
        epstep=1, force=None, align=12, helper=1, nset=1, dup=0, amp=0, d1=0, csl=0, xpos=1, twd=0, xs=0, NW=7, pst=0, cdl=0, bk=0, bkn=0):
    k = K(256, {8: 512, 7: 448, 4: 320}[NW], 2816, stamps=stamps, sbase=64, align=align)
    W1, WD = 32, 96
    k.stamp(0)
    if amp: k("s_memrealtime s[90:91]")
    k(f"""
    s_load_dwordx8 s[8:15], s[0:1], 0
    s_load_dwordx2 s[18:19], s[0:1], 48
    v_readfirstlane_b32 s24, v0
    s_cmp_ge_u32 s2, 224
    s_cbranch_scc1 L_cons
    {"s_cmpk_eq_u32 s24, 320" if pst else ""}
    {"s_cbranch_scc1 L_pst" if pst else ""}
    s_cmpk_lt_u32 s24, 256
    s_cselect_b64 exec, -1, 0
    s_cbranch_execz {'L_t1' if helper else 'L_end'}
    s_and_b32 s20, s2, 7
    s_lshr_b32 s21, s2, 3
    v_and_b32 v5, 7, v0
    v_bfe_u32 v6, v0, 3, 3
    s_lshr_b32 s25, s24, 7
    s_add_u32 s22, s21, s25
    s_cmp_eq_u32 s22, 28
    s_cselect_b32 s22, 0, s22
    s_and_b32 s26, s24, 64
    v_and_b32 v3, 14, v0
    v_bfe_u32 v4, v0, 4, 2
    v_lshl_add_u32 v3, v3, 1, v4
    v_and_b32 v4, 1, v0
    v_lshl_add_u32 v3, v3, 1, v4
    s_mul_i32 s3, s20, {128*7168}
    s_lshl_b32 s4, s22, 8
    s_add_u32 s3, s3, s4
    s_lshl_b32 s4, s26, 1
    s_add_u32 s3, s3, s4
    v_mul_u32_u24 v1, 7168, v6
    v_lshlrev_b32 v5, 4, v5
    v_add3_u32 v1, v1, v5, s3
    s_lshl_b32 s35, s20, 8
    v_lshl_add_u32 v3, v3, 2, s35
    s_mov_b32 s6, {16*7168}
    s_cmp_eq_u32 s25, 0
    s_waitcnt lgkmcnt(0)
    """)
    k.stamp(1)
    seq = []
    def vm(name, text):
        seq.append(name); k(text)
    def wait_for(name):
        k(f"s_waitcnt vmcnt({len(seq) - 1 - seq.index(name)})")
    def issue(n):
        if n == xpos and "x" not in seq: vm("x", "global_load_dword v8, v3, s[8:9]")
        if n == 0: k("s_cselect_b64 s[10:11], s[10:11], s[12:13]")
        if n < 16:
            base = "s[10:11]" if n % 2 == 0 else "s[12:13]"
            vm(n, f"global_load_dwordx4 v[{W1+4*n}:{W1+4*n+3}], v1, {base} {ldf}")
            if n == 0: k(f"s_add_u32 s12, s10, {8*7168}\ns_addc_u32 s13, s11, 0")
            if n % 2 == 1 and n < 15: k("v_add_u32 v1, s6, v1")
        else:
            t = n - 16
            vm(n, f"global_load_dwordx4 v[{WD+4*t}:{WD+4*t+3}], v2, s[14:15] offset:{-4096 if t % 2 == 0 else 0} {ldf}")
            if t % 2 == 1 and t < 7: k("v_add_u32 v2, s7, v2")
    gate = [n - W if n < 16 + pause else 99 for n in range(24)]
    nxt = 0
    while gate[nxt] < 0:
        issue(nxt); nxt += 1
    if xpos == nxt and not xs:
        vm("x", "global_load_dword v8, v3, s[8:9]")
    k(f"""
    s_load_dword s23, s[18:19], 0
    s_lshl_b32 s3, s21, 1
    s_add_u32 s3, s3, s25
    s_lshl_b32 s3, s3, 10
    s_add_u32 s3, s3, s26
    s_lshl_b32 s3, s3, 7
    s_add_u32 s3, s3, s35
    s_addk_i32 s3, 4096
    v_and_b32 v19, 16, v0
    v_and_b32 v7, 32, v0
    v_lshl_add_u32 v2, v19, 4, v7
    v_and_b32 v16, 15, v0
    v_lshl_add_u32 v2, v2, 2, v16
    v_lshl_add_u32 v2, v2, 4, s3
    s_mov_b32 s7, 32768
    v_bfe_i32 v29, v0, 2, 1
    v_bfe_i32 v28, v0, 3, 1
    v_xor_b32 v28, 0xffff, v28
    v_and_b32 v29, v29, v28
    v_xor_b32 v28, v29, v28
    v_and_b32 v17, 3, v0
    v_mul_u32_u24 v4, 0x5555, v17
    s_lshl_b32 s3, s22, 1
    s_add_u32 s3, s3, s25
    s_lshl_b32 s3, s3, 3
    s_add_u32 s3, s3, s20
    s_lshl_b32 s3, s3, 7
    s_add_u32 s3, s3, s26
    s_lshl_b32 s3, s3, 2
    s_addk_i32 s3, {X1_OFF}
    v_lshl_add_u32 v20, v19, 3, v5
    v_add_u32 v20, s3, v20
    s_lshl_b32 s3, s21, 12
    s_add_u32 s3, s3, s24
    s_lshl_b32 s3, s3, 1
    s_addk_i32 s3, {X1_OFF + 2048}
    v_lshl_add_u32 v21, v6, 9, v5
    v_add_u32 v21, s3, v21
    s_add_u32 s3, s20, {X2_OFF >> 16}
    s_lshl_b32 s3, s3, 7
    s_add_u32 s3, s3, s21
    s_lshl_b32 s3, s3, 8
    s_add_u32 s3, s3, s24
    s_lshl_b32 s3, s3, 1
    v_and_b32 v7, 24, v0
    v_lshl_add_u32 v22, v7, 11, v5
    v_add_u32 v22, s3, v22
    s_lshl_b32 s3, s20, 7
    v_lshl_add_u32 v7, v7, 2, s3
    s_getreg_b32 s33, hwreg(HW_REG_XCC_ID, 0, 4)
    s_movk_i32 s29, 0xff
    v_mov_b32 v24, 0
    v_mov_b32 v25, 0
    v_mov_b32 v26, 0
    v_mov_b32 v27, 0
    """)
    if xpos == nxt and xs:
        vm("x", "global_load_dword v8, v3, s[8:9]")
    if epstep < 0:
        vm("ep", f"global_load_dword v5, v7, s[18:19] offset:{EP_OFF}")
    if twd:
        k("s_mov_b64 exec, 1")
        vm("twd", "global_load_dword v6, v2, s[14:15]")
        k("s_mov_b64 exec, -1")
    k.stamp(2)
    def abuild(n):
        for d in range(4):
            k(f"v_and_b32_dpp v{16+d}, v8, v{28+(d&1)} row_newbcast:{2*n+(d>>1)} {DPP}")
    def smf(n):
        k(f"v_smfmac_f32_16x16x64_bf16 v[24:27], v[16:19], v[{W1+8*n}:{W1+8*n+7}], v4")
    done = 0
    xok = False
    for i in range(16):
        now = i % 2 == 1 and done == i // 2 and (xok or xpos <= 2)
        if now:
            if not xok: wait_for("x"); xok = True
            abuild(done)
        todo = nxt < 24 and gate[nxt] <= i
        waited = todo or now or i == 0
        if waited: wait_for(i)
        did = False
        while nxt < 24 and gate[nxt] <= i:
            issue(nxt); nxt += 1; did = True
        if i == epstep:
            vm("ep", f"global_load_dword v5, v7, s[18:19] offset:{EP_OFF}"); did = True
        if now:
            if not did: k("s_nop 0")
            smf(done); done += 1
        elif waited and i >= xpos and done < (i + 1) // 2:
            xok = True
            abuild(done); k("s_nop 1"); smf(done); done += 1
    assert done == 8
    k.stamp(3)
    k(f"""
    s_waitcnt lgkmcnt(0)
    s_add_u32 s23, s23, 1
    s_and_b32 s23, s23, s29
    v_mov_b32 v23, s23
    v_add_u32 v5, 1, v5
    v_lshl_or_b32 v3, v5, 4, s33
    s_mov_b32 s5, {spin}
    {"v_or_b32 v5, 0x80, v5" if pst else "s_nop 0"}
    """)
    for r in range(4):
        k(f"v_permlane32_swap_b32 v{24+r}, v{16+r}")
    for r in range(4):
        k(f"v_add_f32_dpp v{8+r}, v{16+r}, v{24+r} row_ror:8 {DPP}")
    k("s_mov_b64 exec, 0x00ff00ff")
    k("v_bfi_b32 v8, s29, v23, v8")
    vm("x1st", f"global_store_dwordx4 v20, v[8:11], s[18:19] {x1s}")
    k("s_mov_b64 exec, -1")
    k.stamp(4)
    if bar: k("s_barrier")
    vm("hel", f"global_load_dword v6, v7, s[18:19] offset:{HL_OFF} {pf}")
    while nxt < 24:
        issue(nxt); nxt += 1
    for r in range(4): k(f"v_mov_b32 v{24+r}, 0")
    assert seq.index("hel") < seq.index(24 - midpoll)
    wait_for(24 - midpoll)
    if d1: k(f"s_sleep {d1}")
    if stamps: k.stamp(2)
    k(f"""
    L_p1:
    global_load_dwordx4 v[32:35], v21, s[18:19] offset:-2048 {pf}
    global_load_dwordx4 v[36:39], v21, s[18:19] offset:2048 {pf}
    s_sub_u32 s5, s5, 1
    s_cbranch_scc1 L_end
    v_cmp_ne_u32 s[36:37], v3, v6
    s_waitcnt vmcnt(1)
    v_xor_b32 v32, s23, v32
    v_permlane32_swap_b32 v33, v35
    s_waitcnt vmcnt(0)
    """)
    k.stamp(5)
    k(f"""
    v_xor_b32 v36, s23, v36
    v_bitop3_b32 v52, v32, v36, s29 bitop3:0xa8
    v_cmp_ne_u32 vcc, 0, v52
    v_permlane32_swap_b32 v32, v34
    v_pk_add_f32 v[48:49], v[32:33], v[34:35]
    s_cbranch_vccnz L_p1
    v_permlane32_swap_b32 v36, v38
    v_permlane16_swap_b32 v48, v49
    v_add_f32 v48, v48, v49
    v_permlane32_swap_b32 v37, v39
    v_pk_add_f32 v[50:51], v[36:37], v[38:39]
    v_add_f32_dpp v48, v48, v48 row_ror:8 {DPP}
    v_cvt_pk_bf16_f32 v48, 0, v48
    v_mul_f32 v56, 0xbfb8aa3b, v48
    v_exp_f32 v56, v56
    v_permlane16_swap_b32 v50, v51
    v_add_f32 v56, 1.0, v56
    v_rcp_f32 v56, v56
    v_add_f32 v50, v50, v51
    v_mul_f32 v49, v48, v56
    v_cvt_pk_bf16_f32 v49, 0, v49
    v_add_f32_dpp v50, v50, v50 row_ror:8 {DPP}
    v_cvt_pk_bf16_f32 v50, 0, v50
    v_mul_f32 v49, v50, v49
    v_cvt_pk_bf16_f32 v49, v49, v49
    s_cmp_lg_u64 s[36:37], 0
    s_nop 0
    """)
    k.stamp(6)
    def sm(n): k(f"v_smfmac_f32_16x16x64_bf16 v[24:27], v[{56+4*n}:{59+4*n}], v[{WD+8*n}:{WD+8*n+7}], v4")
    for n in range(4):
        for d in range(4):
            k(f"v_and_b32_dpp v{56+4*n+d}, v49, v{28+(d&1)} row_newbcast:{2*n+(d>>1)} {DPP}")
            if n > 0 and d == 1: sm(n - 1)
    k("s_nop 1")
    sm(3)
    if stamps:
        k("s_mov_b32 s84, s5\ns_mov_b32 s86, s36")
    if force == "mix": k("s_bitcmp1_b32 s21, 0")
    if force == "slow": k("s_cmp_eq_u32 s21, s21")
    k(f"""
    s_mov_b32 exec_hi, 0
    s_cbranch_scc1 L_slow
    s_nop 5
    v_bfi_b32 v24, s29, v5, v24
    global_store_dwordx4 v22, v[24:27], s[18:19] {x2s}
    """)
    if stamps:
        k.stamp(7); k("s_branch L_fin")
    else:
        k("s_endpgm")
    k("""
    L_slow:
    s_nop 5
    v_bfi_b32 v24, s29, v5, v24
    global_store_dwordx4 v22, v[24:27], s[18:19] sc1
    """)
    if stamps:
        k.stamp(7); k("s_branch L_fin")
    else:
        k("L_end:\ns_endpgm")
    if pst:
        k(f"""
        L_pst:
        s_and_b32 s3, s2, 7
        s_add_u32 s3, s3, {X2_OFF >> 16}
        s_lshl_b32 s3, s3, 7
        s_lshr_b32 s4, s2, 3
        s_add_u32 s3, s3, s4
        s_lshl_b32 s3, s3, 9
        v_and_b32 v1, 24, v0
        v_and_b32 v2, 7, v0
        v_lshl_add_u32 v1, v1, 7, v2
        v_bfe_u32 v2, v0, 5, 1
        v_lshl_add_u32 v1, v2, 3, v1
        v_lshl_add_u32 v1, v1, 4, s3
        v_mov_b32 v4, 0
        v_mov_b32 v5, 0
        v_mov_b32 v6, 0
        v_mov_b32 v7, 0
        s_waitcnt lgkmcnt(0)
        global_store_dwordx4 v1, v[4:7], s[18:19]
        global_store_dwordx4 v1, v[4:7], s[18:19] offset:256
        s_waitcnt vmcnt(0)
        s_endpgm
        """)
    k(f"""
    L_cons:
    s_cmpk_ge_u32 s2, 256
    s_cbranch_scc1 L_end
    {"s_cmpk_ge_u32 s24, 256" if NW == 4 else ""}
    {"s_cbranch_scc1 L_end" if NW == 4 else ""}
    s_load_dwordx2 s[16:17], s[0:1], 32
    s_and_b32 s27, s2, 7
    s_lshl_b32 s20, s27, 5
    s_and_b32 s21, s2, 24
    s_add_u32 s20, s20, s21
    s_lshl_b32 s22, s20, 2
    s_add_u32 s25, s22, {EP_OFF}
    v_and_b32 v3, 63, v0
    v_lshlrev_b32 v8, 2, v3
    v_mov_b32 v10, 0
    ds_write_b32 v8, v10 offset:2560
    s_waitcnt lgkmcnt(0)
    s_load_dword s23, s[18:19], s25
    s_load_dword s26, s[18:19], 0
    v_and_b32 v7, 31, v0
    v_mul_u32_u24 v9, 80, v7
    s_lshl_b32 s3, s27, 8
    s_and_b32 s4, s2, 8
    s_lshl_b32 s4, s4, 4
    s_add_u32 s3, s3, s4
    s_and_b32 s4, s2, 16
    s_lshr_b32 s4, s4, 1
    s_add_u32 s3, s3, s4
    v_and_b32 v14, 28, v0
    v_add_u32 v7, v7, v14
    v_lshl_add_u32 v7, v7, 1, s3
    s_lshl_b32 s4, s20, 11
    s_mul_i32 s3, s24, {224 // NW}
    s_add_u32 s4, s4, s3
    s_add_u32 s4, s4, {X2_OFF}
    v_lshl_add_u32 v1, v3, 4, s4
    v_min_u32 v18, {31 if NW == 4 else 47}, v3
    v_lshl_add_u32 v18, v18, 4, s4
    v_cmp_gt_u32 vcc, {32 if NW == 4 else 48}, v3
    v_and_b32 v14, 7, v0
    v_bfe_u32 v19, v0, 4, 2
    v_cndmask_b32 v20, 0, 1.0, vcc
    v_cndmask_b32 v21, 0, 1.0, vcc
    v_lshl_add_u32 v14, v14, 2, v19
    v_mul_u32_u24 v14, 80, v14
    v_bfe_u32 v19, v0, 3, 1
    v_lshl_add_u32 v14, v19, 2, v14
    s_lshr_b32 s4, s24, 3
    v_add_u32 v14, s4, v14
    s_getreg_b32 s33, hwreg(HW_REG_XCC_ID, 0, 4)
    s_movk_i32 s29, 0xff
    v_mov_b32 v4, s22
    v_mov_b32 v10, 1
    s_mov_b32 s5, {spin}
    s_waitcnt lgkmcnt(0)
    s_add_u32 s23, s23, 1
    s_add_u32 s26, s26, 1
    s_lshl_b32 s4, s23, 4
    s_or_b32 s33, s33, s4
    v_mov_b32 v5, s33
    global_store_dword v4, v5, s[18:19] offset:{HL_OFF}
    v_mov_b32 v6, s23
    v_mov_b32 v11, s26
    s_and_b32 s23, s23, s29
    {"s_bitset1_b32 s23, 7" if pst else ""}
    {"s_sleep "+str(cdl) if cdl else ""}
    global_load_ushort v15, v7, s[16:17]
    """)
    if amp:
        k("""
        s_and_b32 s4, s2, 31
        s_lshl_b32 s4, s4, 7
        s_add_u32 s4, s4, 0x200000
        v_mov_b32 v16, s4
        v_mov_b32 v17, s90
        global_store_dword v16, v17, s[18:19] sc1
        v_and_b32 v16, 31, v0
        v_lshlrev_b32 v16, 7, v16
        v_add_u32 v16, 0x200000, v16
        """)
    k(f"""
    s_barrier
    """)
    if bkn:
        k(f"""
        s_branch L_p2
        L_p2b:
        s_cmp_lt_u32 s5, {spin - bkn}
        s_cbranch_scc1 L_p2
        s_sleep {bk}
        """)
    k(f"""
    L_p2:
    """)
    if NW == 8:
        k(f"""
        global_load_dwordx4 v[32:35], v1, s[18:19] {pf}
        global_load_dwordx4 v[36:39], v18, s[18:19] offset:1024 {pf}
        s_sub_u32 s5, s5, 1
        s_cbranch_scc1 L_end
        s_waitcnt vmcnt(0)
        v_xor_b32 v32, s23, v32
        v_xor_b32 v36, s23, v36
        v_bitop3_b32 v26, v32, v36, s29 bitop3:0xa8
        v_cmp_ne_u32 vcc, 0, v26
        v_pk_fma_f32 v[22:23], v[36:37], v[20:21], v[32:33]
        v_pk_fma_f32 v[24:25], v[38:39], v[20:21], v[34:35]
        s_cbranch_vccnz L_p2
        """)
    elif NW == 7:
        k(f"""
        global_load_dwordx4 v[32:35], v1, s[18:19] {pf}
        global_load_dwordx4 v[36:39], v1, s[18:19] offset:1024 {pf}
        s_sub_u32 s5, s5, 1
        s_cbranch_scc1 L_end
        s_waitcnt vmcnt(0)
        v_xor_b32 v32, s23, v32
        v_xor_b32 v36, s23, v36
        v_bitop3_b32 v26, v32, v36, s29 bitop3:0xa8
        v_cmp_ne_u32 vcc, 0, v26
        v_pk_add_f32 v[22:23], v[36:37], v[32:33]
        v_pk_add_f32 v[24:25], v[38:39], v[34:35]
        s_cbranch_vccnz {"L_p2b" if bkn else "L_p2"}
        """)
    else:
        k(f"""
        global_load_dwordx4 v[32:35], v1, s[18:19] {pf}
        global_load_dwordx4 v[36:39], v1, s[18:19] offset:1024 {pf}
        global_load_dwordx4 v[40:43], v1, s[18:19] offset:2048 {pf}
        global_load_dwordx4 v[44:47], v18, s[18:19] offset:3072 {pf}
        s_sub_u32 s5, s5, 1
        s_cbranch_scc1 L_end
        s_waitcnt vmcnt(2)
        v_xor_b32 v32, s23, v32
        v_xor_b32 v36, s23, v36
        v_pk_add_f32 v[22:23], v[36:37], v[32:33]
        v_pk_add_f32 v[24:25], v[38:39], v[34:35]
        s_waitcnt vmcnt(1)
        v_xor_b32 v40, s23, v40
        v_or3_b32 v26, v32, v36, v40
        v_pk_add_f32 v[22:23], v[22:23], v[40:41]
        v_pk_add_f32 v[24:25], v[24:25], v[42:43]
        s_waitcnt vmcnt(0)
        v_xor_b32 v44, s23, v44
        v_bitop3_b32 v26, v26, v44, s29 bitop3:0xa8
        v_cmp_ne_u32 vcc, 0, v26
        v_pk_fma_f32 v[22:23], v[44:45], v[20:21], v[22:23]
        v_pk_fma_f32 v[24:25], v[46:47], v[20:21], v[24:25]
        s_cbranch_vccnz L_p2
        """)
    k.stamp(8)
    k(f"""
    s_cmp_lg_u32 s20, 0
    v_permlane32_swap_b32 v22, v24
    v_permlane32_swap_b32 v23, v25
    v_pk_add_f32 v[22:23], v[22:23], v[24:25]
    s_nop 1
    v_permlane16_swap_b32 v22, v23
    v_add_f32 v30, v22, v23
    ds_write_b32 v14, v30
    s_mov_b32 exec_hi, 0
    ds_add_rtn_u32 v12, v8, v10 offset:2560
    ds_read_b128 v[64:67], v9
    ds_read_b128 v[68:71], v9 offset:16
    """)
    if NW > 4:
        k(f"""
        ds_read_b128 v[72:75], v9 offset:32
        {"ds_read_b128 v[76:79], v9 offset:48" if NW == 8 else "ds_read_b64 v[76:77], v9 offset:48"}
        s_waitcnt lgkmcnt({0 if stamps else 4})
        v_cmpx_eq_u32 vcc, {NW-1}, v12
        s_cbranch_vccz L_fin
        s_waitcnt lgkmcnt(2)
        v_pk_add_f32 v[64:65], v[64:65], v[66:67]
        v_pk_add_f32 v[68:69], v[68:69], v[70:71]
        v_pk_add_f32 v[64:65], v[64:65], v[68:69]
        s_waitcnt lgkmcnt(0)
        v_pk_add_f32 v[72:73], v[72:73], v[74:75]
        {"v_pk_add_f32 v[76:77], v[76:77], v[78:79]" if NW == 8 else ""}
        v_pk_add_f32 v[64:65], v[64:65], v[72:73]
        v_pk_add_f32 v[64:65], v[64:65], v[76:77]
        """)
    else:
        k(f"""
        s_waitcnt lgkmcnt({0 if stamps else 2})
        v_cmpx_eq_u32 vcc, {NW-1}, v12
        s_cbranch_vccz L_fin
        s_waitcnt lgkmcnt(0)
        v_pk_add_f32 v[64:65], v[64:65], v[66:67]
        v_pk_add_f32 v[68:69], v[68:69], v[70:71]
        v_pk_add_f32 v[64:65], v[64:65], v[68:69]
        """)
    k(f"""
    v_add_f32 v64, v64, v65
    v_cvt_pk_bf16_f32 v13, v64, v64
    global_store_short v7, v13, s[16:17]
    global_store_dword v4, v6, s[18:19] offset:{EP_OFF}
    s_cbranch_scc1 L_fin2
    global_store_dword v4, v11, s[18:19]
    L_fin2:
    """)
    if amp:
        k(f"""
        s_waitcnt vmcnt(0)
        s_memrealtime s[92:93]
        global_load_dword v17, v16, s[18:19] sc1
        s_waitcnt vmcnt(0) lgkmcnt(0)
        v_sub_u32 v17, s92, v17
        s_mov_b32 s4, 0
        """)
        for i in range(32):
            if i % 8 == 0: continue
            k(f"v_readlane_b32 s5, v17, {i}\ns_add_u32 s4, s4, s5")
        k(f"""
        s_min_u32 s4, s4, 42000
        s_mul_i32 s4, s4, {int(amp*65536/28)}
        s_lshr_b32 s4, s4, 16
        L_spin:
        s_sleep 1
        s_memrealtime s[6:7]
        s_waitcnt lgkmcnt(0)
        s_sub_u32 s5, s6, s92
        s_cmp_lt_u32 s5, s4
        s_cbranch_scc1 L_spin
        """)
    k("L_fin:")
    if stamps:
        k("s_mov_b64 exec, -1\ns_waitcnt vmcnt(0)")
        k.stamp(9)
        k.dump_stamps(18, n=12, vtmp=40)
        k("L_end:")
    text = k.finish(128, 96)
    text = add_touch_points(text, limit="L_cons")
    return text.replace("L_cons:", f".org {NAME}_kernel + 2176\nL_cons:")

from gen4 import parse
if __name__ == "__main__":
    names = []
    for spec in sys.argv[1:]:
        nm = "v8_" + spec.replace(",", "_").replace("=", "").replace("+", "") + ".s"
        open(nm, "w").write(gen(**parse(spec)))
        names.append(nm)
    print(" ".join(names))
```

```python
import sys
from kcommon import *
EP_OFF = 0x400
HL_OFF = 0x800
X1_OFF = 0x1000
X2_OFF = 0x40000
DPP = "row_mask:0xf bank_mask:0xf"
def gen(stamps=False, W=6, pause=4, bar=1, ldf="nt", x1s="sc1", x2s="", pf="sc1", midpoll=4, spin=0x200000,
        epstep=1, force=None, align=12, helper=1, nset=1, dup=0, amp=0, d1=0, csl=0, xpos=1, twd=0, xs=0, NW=7, pst=0, cdl=0, bk=0, bkn=0, vg=128, lds=2816, orc=0, orl=0, two=0, cfill=None, ctlb=0, tp=0):
    k = K(256, {8: 512, 7: 448, 4: 320}[NW], lds, stamps=stamps, sbase=64, align=align)
    W1, WD = 32, 96
    k.stamp(0)
    if amp or orc or orl: k("s_memrealtime s[90:91]")
    k(f"""
    s_load_dwordx8 s[8:15], s[0:1], 0
    s_load_dwordx2 s[18:19], s[0:1], 48
    v_readfirstlane_b32 s24, v0
    s_cmp_ge_u32 s2, 224
    s_cbranch_scc1 L_cons
    {"s_cmpk_eq_u32 s24, 320" if pst else ""}
    {"s_cbranch_scc1 L_pst" if pst else ""}
    s_cmpk_lt_u32 s24, 256
    s_cselect_b64 exec, -1, 0
    s_cbranch_execz {'L_t1' if helper else 'L_end'}
    s_and_b32 s20, s2, 7
    s_lshr_b32 s21, s2, 3
    v_and_b32 v5, 7, v0
    v_bfe_u32 v6, v0, 3, 3
    s_lshr_b32 s25, s24, 7
    s_add_u32 s22, s21, s25
    s_cmp_eq_u32 s22, 28
    s_cselect_b32 s22, 0, s22
    s_and_b32 s26, s24, 64
    v_and_b32 v3, 14, v0
    v_bfe_u32 v4, v0, 4, 2
    v_lshl_add_u32 v3, v3, 1, v4
    v_and_b32 v4, 1, v0
    v_lshl_add_u32 v3, v3, 1, v4
    s_mul_i32 s3, s20, {128*7168}
    s_lshl_b32 s4, s22, 8
    s_add_u32 s3, s3, s4
    s_lshl_b32 s4, s26, 1
    s_add_u32 s3, s3, s4
    v_mul_u32_u24 v1, 7168, v6
    v_lshlrev_b32 v5, 4, v5
    v_add3_u32 v1, v1, v5, s3
    s_lshl_b32 s35, s20, 8
    v_lshl_add_u32 v3, v3, 2, s35
    s_mov_b32 s6, {16*7168}
    s_cmp_eq_u32 s25, 0
    s_waitcnt lgkmcnt(0)
    """)
    k.stamp(1)
    seq = []
    def vm(name, text):
        seq.append(name); k(text)
    def wait_for(name):
        k(f"s_waitcnt vmcnt({len(seq) - 1 - seq.index(name)})")
    def issue(n):
        if n == xpos and "x" not in seq: vm("x", "global_load_dword v8, v3, s[8:9]")
        if n == 0: k("s_cselect_b64 s[10:11], s[10:11], s[12:13]")
        if n < 16:
            base = "s[10:11]" if n % 2 == 0 else "s[12:13]"
            vm(n, f"global_load_dwordx4 v[{W1+4*n}:{W1+4*n+3}], v1, {base} {ldf}")
            if n == 0: k(f"s_add_u32 s12, s10, {8*7168}\ns_addc_u32 s13, s11, 0")
            if n % 2 == 1 and n < 15: k("v_add_u32 v1, s6, v1")
        else:
            t = n - 16
            vm(n, f"global_load_dwordx4 v[{WD+4*t}:{WD+4*t+3}], v2, s[14:15] offset:{-4096 if t % 2 == 0 else 0} {ldf}")
            if t % 2 == 1 and t < 7: k("v_add_u32 v2, s7, v2")
    gate = [n - W if n < 16 + pause else 99 for n in range(24)]
    nxt = 0
    while gate[nxt] < 0:
        issue(nxt); nxt += 1
    if xpos == nxt and not xs:
        vm("x", "global_load_dword v8, v3, s[8:9]")
    k(f"""
    s_load_dword s23, s[18:19], 0
    s_lshl_b32 s3, s21, 1
    s_add_u32 s3, s3, s25
    s_lshl_b32 s3, s3, 10
    s_add_u32 s3, s3, s26
    s_lshl_b32 s3, s3, 7
    s_add_u32 s3, s3, s35
    s_addk_i32 s3, 4096
    v_and_b32 v19, 16, v0
    v_and_b32 v7, 32, v0
    v_lshl_add_u32 v2, v19, 4, v7
    v_and_b32 v16, 15, v0
    v_lshl_add_u32 v2, v2, 2, v16
    v_lshl_add_u32 v2, v2, 4, s3
    s_mov_b32 s7, 32768
    v_bfe_i32 v29, v0, 2, 1
    v_bfe_i32 v28, v0, 3, 1
    v_xor_b32 v28, 0xffff, v28
    v_and_b32 v29, v29, v28
    v_xor_b32 v28, v29, v28
    v_and_b32 v17, 3, v0
    v_mul_u32_u24 v4, 0x5555, v17
    s_lshl_b32 s3, s22, 1
    s_add_u32 s3, s3, s25
    s_lshl_b32 s3, s3, 3
    s_add_u32 s3, s3, s20
    s_lshl_b32 s3, s3, 7
    s_add_u32 s3, s3, s26
    s_lshl_b32 s3, s3, 2
    s_addk_i32 s3, {X1_OFF}
    v_lshl_add_u32 v20, v19, 3, v5
    v_add_u32 v20, s3, v20
    s_lshl_b32 s3, s21, 12
    s_add_u32 s3, s3, s24
    s_lshl_b32 s3, s3, 1
    s_addk_i32 s3, {X1_OFF + 2048}
    v_lshl_add_u32 v21, v6, 9, v5
    v_add_u32 v21, s3, v21
    s_add_u32 s3, s20, {X2_OFF >> 16}
    s_lshl_b32 s3, s3, 7
    s_add_u32 s3, s3, s21
    s_lshl_b32 s3, s3, 8
    s_add_u32 s3, s3, s24
    s_lshl_b32 s3, s3, 1
    v_and_b32 v7, 24, v0
    v_lshl_add_u32 v22, v7, 11, v5
    v_add_u32 v22, s3, v22
    s_lshl_b32 s3, s20, 7
    v_lshl_add_u32 v7, v7, 2, s3
    s_getreg_b32 s33, hwreg(HW_REG_XCC_ID, 0, 4)
    s_movk_i32 s29, 0xff
    v_mov_b32 v24, 0
    v_mov_b32 v25, 0
    v_mov_b32 v26, 0
    v_mov_b32 v27, 0
    """)
    if xpos == nxt and xs:
        vm("x", "global_load_dword v8, v3, s[8:9]")
    if epstep < 0:
        vm("ep", f"global_load_dword v5, v7, s[18:19] offset:{EP_OFF}")
    if twd:
        k("s_mov_b64 exec, 1")
        vm("twd", "global_load_dword v6, v2, s[14:15]")
        k("s_mov_b64 exec, -1")
    k.stamp(2)
    def abuild(n):
        for d in range(4):
            k(f"v_and_b32_dpp v{16+d}, v8, v{28+(d&1)} row_newbcast:{2*n+(d>>1)} {DPP}")
    def smf(n):
        k(f"v_smfmac_f32_16x16x64_bf16 v[24:27], v[16:19], v[{W1+8*n}:{W1+8*n+7}], v4")
    done = 0
    xok = False
    for i in range(16):
        now = i % 2 == 1 and done == i // 2 and (xok or xpos <= 2)
        if now:
            if not xok: wait_for("x"); xok = True
            abuild(done)
        todo = nxt < 24 and gate[nxt] <= i
        waited = todo or now or i == 0
        if waited: wait_for(i)
        did = False
        while nxt < 24 and gate[nxt] <= i:
            issue(nxt); nxt += 1; did = True
        if i == epstep:
            vm("ep", f"global_load_dword v5, v7, s[18:19] offset:{EP_OFF}"); did = True
        if now:
            if not did: k("s_nop 0")
            smf(done); done += 1
        elif waited and i >= xpos and done < (i + 1) // 2:
            xok = True
            abuild(done); k("s_nop 1"); smf(done); done += 1
    assert done == 8
    k.stamp(3)
    k(f"""
    s_waitcnt lgkmcnt(0)
    s_add_u32 s23, s23, 1
    s_and_b32 s23, s23, s29
    v_mov_b32 v23, s23
    v_add_u32 v5, 1, v5
    v_lshl_or_b32 v3, v5, 4, s33
    s_mov_b32 s5, {spin}
    {"v_or_b32 v5, 0x80, v5" if pst else "s_nop 0"}
    """)
    for r in range(4):
        k(f"v_permlane32_swap_b32 v{24+r}, v{16+r}")
    for r in range(4):
        k(f"v_add_f32_dpp v{8+r}, v{16+r}, v{24+r} row_ror:8 {DPP}")
    k("s_mov_b64 exec, 0x00ff00ff")
    k("v_bfi_b32 v8, s29, v23, v8")
    vm("x1st", f"global_store_dwordx4 v20, v[8:11], s[18:19] {x1s}")
    if two:
        k("v_add_u32 v20, 0x100000, v20")
        vm("x1st2", f"global_store_dwordx4 v20, v[8:11], s[18:19] {x1s}")
    k("s_mov_b64 exec, -1")
    k.stamp(4)
    if bar: k("s_barrier")
    vm("hel", f"global_load_dword v6, v7, s[18:19] offset:{HL_OFF} {pf}")
    while nxt < 24:
        issue(nxt); nxt += 1
    for r in range(4): k(f"v_mov_b32 v{24+r}, 0")
    helok = midpoll == 0 or seq.index("hel") < seq.index(24 - midpoll)
    wait_for(24 - midpoll if midpoll else "hel")
    if d1: k(f"s_sleep {d1}")
    if orl:
        k(f"""
        s_memrealtime s[92:93]
        s_waitcnt lgkmcnt(0)
        s_sub_u32 s4, s92, s90
        s_cmp_ge_u32 s4, {orl}
        s_cbranch_scc1 L_p1
        """)
        wait_for(24 - midpoll + 1)
    if orc:
        k(f"""
        L_orc:
        s_memrealtime s[92:93]
        s_waitcnt lgkmcnt(0)
        s_sub_u32 s4, s92, s90
        s_cmp_lt_u32 s4, {orc}
        s_cbranch_scc1 L_orc
        """)
    if stamps: k.stamp(2)
    k(f"""
    L_p1:
    global_load_dwordx4 v[32:35], v21, s[18:19] offset:-2048 {pf}
    global_load_dwordx4 v[36:39], v21, s[18:19] offset:2048 {pf}
    {"v_or_b32 v21, 0x100000, v21" if two == 1 else ""}
    s_sub_u32 s5, s5, 1
    s_cbranch_scc1 L_end
    {"" if helok else "s_waitcnt vmcnt(2)"}
    v_cmp_ne_u32 s[36:37], v3, v6
    s_waitcnt vmcnt(1)
    v_xor_b32 v32, s23, v32
    v_permlane32_swap_b32 v33, v35
    s_waitcnt vmcnt(0)
    """)
    k.stamp(5)
    k(f"""
    v_xor_b32 v36, s23, v36
    v_bitop3_b32 v52, v32, v36, s29 bitop3:0xa8
    v_cmp_ne_u32 vcc, 0, v52
    v_permlane32_swap_b32 v32, v34
    v_pk_add_f32 v[48:49], v[32:33], v[34:35]
    s_cbranch_vccnz L_p1
    v_permlane32_swap_b32 v36, v38
    v_permlane16_swap_b32 v48, v49
    v_add_f32 v48, v48, v49
    v_permlane32_swap_b32 v37, v39
    v_pk_add_f32 v[50:51], v[36:37], v[38:39]
    v_add_f32_dpp v48, v48, v48 row_ror:8 {DPP}
    v_cvt_pk_bf16_f32 v48, 0, v48
    v_mul_f32 v56, 0xbfb8aa3b, v48
    v_exp_f32 v56, v56
    v_permlane16_swap_b32 v50, v51
    v_add_f32 v56, 1.0, v56
    v_rcp_f32 v56, v56
    v_add_f32 v50, v50, v51
    v_mul_f32 v49, v48, v56
    v_cvt_pk_bf16_f32 v49, 0, v49
    v_add_f32_dpp v50, v50, v50 row_ror:8 {DPP}
    v_cvt_pk_bf16_f32 v50, 0, v50
    v_mul_f32 v49, v50, v49
    v_cvt_pk_bf16_f32 v49, v49, v49
    s_cmp_lg_u64 s[36:37], 0
    s_nop 0
    """)
    k.stamp(6)
    def sm(n): k(f"v_smfmac_f32_16x16x64_bf16 v[24:27], v[{56+4*n}:{59+4*n}], v[{WD+8*n}:{WD+8*n+7}], v4")
    for n in range(4):
        for d in range(4):
            k(f"v_and_b32_dpp v{56+4*n+d}, v49, v{28+(d&1)} row_newbcast:{2*n+(d>>1)} {DPP}")
            if n > 0 and d == 1: sm(n - 1)
    k("s_nop 1")
    sm(3)
    if stamps:
        k("s_mov_b32 s84, s5\ns_mov_b32 s86, s36")
    if force == "mix": k("s_bitcmp1_b32 s21, 0")
    if force == "slow": k("s_cmp_eq_u32 s21, s21")
    k(f"""
    s_mov_b32 exec_hi, 0
    s_cbranch_scc1 L_slow
    s_nop 5
    v_bfi_b32 v24, s29, v5, v24
    global_store_dwordx4 v22, v[24:27], s[18:19] {x2s}
    """)
    if stamps:
        k.stamp(7); k("s_branch L_fin")
    else:
        k("s_endpgm")
    k("""
    L_slow:
    s_nop 5
    v_bfi_b32 v24, s29, v5, v24
    global_store_dwordx4 v22, v[24:27], s[18:19] sc1
    """)
    if stamps:
        k.stamp(7); k("s_branch L_fin")
    else:
        k("L_end:\ns_endpgm")
    if pst:
        k(f"""
        L_pst:
        s_and_b32 s3, s2, 7
        s_add_u32 s3, s3, {X2_OFF >> 16}
        s_lshl_b32 s3, s3, 7
        s_lshr_b32 s4, s2, 3
        s_add_u32 s3, s3, s4
        s_lshl_b32 s3, s3, 9
        v_and_b32 v1, 24, v0
        v_and_b32 v2, 7, v0
        v_lshl_add_u32 v1, v1, 7, v2
        v_bfe_u32 v2, v0, 5, 1
        v_lshl_add_u32 v1, v2, 3, v1
        v_lshl_add_u32 v1, v1, 4, s3
        v_mov_b32 v4, 0
        v_mov_b32 v5, 0
        v_mov_b32 v6, 0
        v_mov_b32 v7, 0
        s_waitcnt lgkmcnt(0)
        global_store_dwordx4 v1, v[4:7], s[18:19]
        global_store_dwordx4 v1, v[4:7], s[18:19] offset:256
        s_waitcnt vmcnt(0)
        s_endpgm
        """)
    k(f"""
    L_cons:
    s_cmpk_ge_u32 s2, 256
    s_cbranch_scc1 L_end
    {"s_cmpk_ge_u32 s24, 256" if NW == 4 else ""}
    {"s_cbranch_scc1 L_end" if NW == 4 else ""}
    s_load_dwordx2 s[16:17], s[0:1], 32
    s_and_b32 s27, s2, 7
    s_lshl_b32 s20, s27, 5
    s_and_b32 s21, s2, 24
    s_add_u32 s20, s20, s21
    s_lshl_b32 s22, s20, 2
    s_add_u32 s25, s22, {EP_OFF}
    v_and_b32 v3, 63, v0
    v_lshlrev_b32 v8, 2, v3
    v_mov_b32 v10, 0
    ds_write_b32 v8, v10 offset:2560
    s_waitcnt lgkmcnt(0)
    s_load_dword s23, s[18:19], s25
    s_load_dword s26, s[18:19], 0
    """)
    if tp:
        k("""
        s_waitcnt lgkmcnt(0)
        s_lshl_b32 s4, s21, 18
        s_lshl_b32 s3, s27, 9
        s_add_u32 s4, s4, s3
        v_mov_b32 v15, s4
        s_memrealtime s[80:81]
        s_waitcnt lgkmcnt(0)
        global_load_dword v16, v15, s[14:15] nt
        s_waitcnt vmcnt(0)
        s_memrealtime s[82:83]
        s_waitcnt lgkmcnt(0)
        global_load_dword v16, v15, s[14:15] offset:256 nt
        s_waitcnt vmcnt(0)
        s_memrealtime s[84:85]
        s_waitcnt lgkmcnt(0)
        """)
    if ctlb:
        k("""
        v_min_u32 v15, 6, v3
        v_lshlrev_b32 v15, 20, v15
        global_load_dword v16, v15, s[14:15] nt
        """)
        if ctlb > 1:
            k("global_load_dword v16, v15, s[10:11] nt\nglobal_load_dword v16, v15, s[12:13] nt")
    k(f"""
    v_and_b32 v7, 31, v0
    v_mul_u32_u24 v9, 80, v7
    s_lshl_b32 s3, s27, 8
    s_and_b32 s4, s2, 8
    s_lshl_b32 s4, s4, 4
    s_add_u32 s3, s3, s4
    s_and_b32 s4, s2, 16
    s_lshr_b32 s4, s4, 1
    s_add_u32 s3, s3, s4
    v_and_b32 v14, 28, v0
    v_add_u32 v7, v7, v14
    v_lshl_add_u32 v7, v7, 1, s3
    s_lshl_b32 s4, s20, 11
    s_mul_i32 s3, s24, {224 // NW}
    s_add_u32 s4, s4, s3
    s_add_u32 s4, s4, {X2_OFF}
    v_lshl_add_u32 v1, v3, 4, s4
    v_min_u32 v18, {31 if NW == 4 else 47}, v3
    v_lshl_add_u32 v18, v18, 4, s4
    v_cmp_gt_u32 vcc, {32 if NW == 4 else 48}, v3
    v_and_b32 v14, 7, v0
    v_bfe_u32 v19, v0, 4, 2
    v_cndmask_b32 v20, 0, 1.0, vcc
    v_cndmask_b32 v21, 0, 1.0, vcc
    v_lshl_add_u32 v14, v14, 2, v19
    v_mul_u32_u24 v14, 80, v14
    v_bfe_u32 v19, v0, 3, 1
    v_lshl_add_u32 v14, v19, 2, v14
    s_lshr_b32 s4, s24, 3
    v_add_u32 v14, s4, v14
    s_getreg_b32 s33, hwreg(HW_REG_XCC_ID, 0, 4)
    s_movk_i32 s29, 0xff
    v_mov_b32 v4, s22
    v_mov_b32 v10, 1
    s_mov_b32 s5, {spin}
    s_waitcnt lgkmcnt(0)
    s_add_u32 s23, s23, 1
    s_add_u32 s26, s26, 1
    s_lshl_b32 s4, s23, 4
    s_or_b32 s33, s33, s4
    v_mov_b32 v5, s33
    """)
    if cfill is not None:
        k(f"""
        v_not_b32 v32, s23
        global_store_dwordx4 v1, v[32:35], s[18:19] {cfill}
        global_store_dwordx4 v1, v[32:35], s[18:19] offset:1024 {cfill}
        s_waitcnt vmcnt(0)
        s_barrier
        """)
    k(f"""
    global_store_dword v4, v5, s[18:19] offset:{HL_OFF}
    v_mov_b32 v6, s23
    v_mov_b32 v11, s26
    s_and_b32 s23, s23, s29
    {"s_bitset1_b32 s23, 7" if pst else ""}
    {"s_sleep "+str(cdl) if cdl else ""}
    global_load_ushort v15, v7, s[16:17]
    """)
    if amp:
        k("""
        s_and_b32 s4, s2, 31
        s_lshl_b32 s4, s4, 7
        s_add_u32 s4, s4, 0x200000
        v_mov_b32 v16, s4
        v_mov_b32 v17, s90
        global_store_dword v16, v17, s[18:19] sc1
        v_and_b32 v16, 31, v0
        v_lshlrev_b32 v16, 7, v16
        v_add_u32 v16, 0x200000, v16
        """)
    k(f"""
    s_barrier
    """)
    if bkn:
        k(f"""
        s_branch L_p2
        L_p2b:
        s_cmp_lt_u32 s5, {spin - bkn}
        s_cbranch_scc1 L_p2
        s_sleep {bk}
        """)
    k(f"""
    L_p2:
    """)
    if NW == 8:
        k(f"""
        global_load_dwordx4 v[32:35], v1, s[18:19] {pf}
        global_load_dwordx4 v[36:39], v18, s[18:19] offset:1024 {pf}
        s_sub_u32 s5, s5, 1
        s_cbranch_scc1 L_end
        s_waitcnt vmcnt(0)
        v_xor_b32 v32, s23, v32
        v_xor_b32 v36, s23, v36
        v_bitop3_b32 v26, v32, v36, s29 bitop3:0xa8
        v_cmp_ne_u32 vcc, 0, v26
        v_pk_fma_f32 v[22:23], v[36:37], v[20:21], v[32:33]
        v_pk_fma_f32 v[24:25], v[38:39], v[20:21], v[34:35]
        s_cbranch_vccnz L_p2
        """)
    elif NW == 7:
        k(f"""
        global_load_dwordx4 v[32:35], v1, s[18:19] {pf}
        global_load_dwordx4 v[36:39], v1, s[18:19] offset:1024 {pf}
        s_sub_u32 s5, s5, 1
        s_cbranch_scc1 L_end
        s_waitcnt vmcnt(0)
        v_xor_b32 v32, s23, v32
        v_xor_b32 v36, s23, v36
        v_bitop3_b32 v26, v32, v36, s29 bitop3:0xa8
        v_cmp_ne_u32 vcc, 0, v26
        v_pk_add_f32 v[22:23], v[36:37], v[32:33]
        v_pk_add_f32 v[24:25], v[38:39], v[34:35]
        s_cbranch_vccnz {"L_p2b" if bkn else "L_p2"}
        """)
    else:
        k(f"""
        global_load_dwordx4 v[32:35], v1, s[18:19] {pf}
        global_load_dwordx4 v[36:39], v1, s[18:19] offset:1024 {pf}
        global_load_dwordx4 v[40:43], v1, s[18:19] offset:2048 {pf}
        global_load_dwordx4 v[44:47], v18, s[18:19] offset:3072 {pf}
        s_sub_u32 s5, s5, 1
        s_cbranch_scc1 L_end
        s_waitcnt vmcnt(2)
        v_xor_b32 v32, s23, v32
        v_xor_b32 v36, s23, v36
        v_pk_add_f32 v[22:23], v[36:37], v[32:33]
        v_pk_add_f32 v[24:25], v[38:39], v[34:35]
        s_waitcnt vmcnt(1)
        v_xor_b32 v40, s23, v40
        v_or3_b32 v26, v32, v36, v40
        v_pk_add_f32 v[22:23], v[22:23], v[40:41]
        v_pk_add_f32 v[24:25], v[24:25], v[42:43]
        s_waitcnt vmcnt(0)
        v_xor_b32 v44, s23, v44
        v_bitop3_b32 v26, v26, v44, s29 bitop3:0xa8
        v_cmp_ne_u32 vcc, 0, v26
        v_pk_fma_f32 v[22:23], v[44:45], v[20:21], v[22:23]
        v_pk_fma_f32 v[24:25], v[46:47], v[20:21], v[24:25]
        s_cbranch_vccnz L_p2
        """)
    k.stamp(8)
    k(f"""
    s_cmp_lg_u32 s20, 0
    v_permlane32_swap_b32 v22, v24
    v_permlane32_swap_b32 v23, v25
    v_pk_add_f32 v[22:23], v[22:23], v[24:25]
    s_nop 1
    v_permlane16_swap_b32 v22, v23
    v_add_f32 v30, v22, v23
    ds_write_b32 v14, v30
    s_mov_b32 exec_hi, 0
    ds_add_rtn_u32 v12, v8, v10 offset:2560
    ds_read_b128 v[64:67], v9
    ds_read_b128 v[68:71], v9 offset:16
    """)
    if NW > 4:
        k(f"""
        ds_read_b128 v[72:75], v9 offset:32
        {"ds_read_b128 v[76:79], v9 offset:48" if NW == 8 else "ds_read_b64 v[76:77], v9 offset:48"}
        s_waitcnt lgkmcnt({0 if stamps else 4})
        v_cmpx_eq_u32 vcc, {NW-1}, v12
        s_cbranch_vccz L_fin
        s_waitcnt lgkmcnt(2)
        v_pk_add_f32 v[64:65], v[64:65], v[66:67]
        v_pk_add_f32 v[68:69], v[68:69], v[70:71]
        v_pk_add_f32 v[64:65], v[64:65], v[68:69]
        s_waitcnt lgkmcnt(0)
        v_pk_add_f32 v[72:73], v[72:73], v[74:75]
        {"v_pk_add_f32 v[76:77], v[76:77], v[78:79]" if NW == 8 else ""}
        v_pk_add_f32 v[64:65], v[64:65], v[72:73]
        v_pk_add_f32 v[64:65], v[64:65], v[76:77]
        """)
    else:
        k(f"""
        s_waitcnt lgkmcnt({0 if stamps else 2})
        v_cmpx_eq_u32 vcc, {NW-1}, v12
        s_cbranch_vccz L_fin
        s_waitcnt lgkmcnt(0)
        v_pk_add_f32 v[64:65], v[64:65], v[66:67]
        v_pk_add_f32 v[68:69], v[68:69], v[70:71]
        v_pk_add_f32 v[64:65], v[64:65], v[68:69]
        """)
    k(f"""
    v_add_f32 v64, v64, v65
    v_cvt_pk_bf16_f32 v13, v64, v64
    global_store_short v7, v13, s[16:17]
    global_store_dword v4, v6, s[18:19] offset:{EP_OFF}
    s_cbranch_scc1 L_fin2
    global_store_dword v4, v11, s[18:19]
    L_fin2:
    """)
    if amp:
        k(f"""
        s_waitcnt vmcnt(0)
        s_memrealtime s[92:93]
        global_load_dword v17, v16, s[18:19] sc1
        s_waitcnt vmcnt(0) lgkmcnt(0)
        v_sub_u32 v17, s92, v17
        s_mov_b32 s4, 0
        """)
        for i in range(32):
            if i % 8 == 0: continue
            k(f"v_readlane_b32 s5, v17, {i}\ns_add_u32 s4, s4, s5")
        k(f"""
        s_min_u32 s4, s4, 42000
        s_mul_i32 s4, s4, {int(amp*65536/28)}
        s_lshr_b32 s4, s4, 16
        L_spin:
        s_sleep 1
        s_memrealtime s[6:7]
        s_waitcnt lgkmcnt(0)
        s_sub_u32 s5, s6, s92
        s_cmp_lt_u32 s5, s4
        s_cbranch_scc1 L_spin
        """)
    if tp:
        k(f"""
        s_memrealtime s[92:93]
        s_waitcnt lgkmcnt(0)
        s_sub_u32 s4, s{80+2*tp}, s{78+2*tp}
        s_min_u32 s4, s4, 500
        s_mul_i32 s4, s4, 20
        s_cmp_eq_u32 s20, 72
        s_cselect_b32 s4, s4, 0
        L_spin:
        s_sleep 1
        s_memrealtime s[6:7]
        s_waitcnt lgkmcnt(0)
        s_sub_u32 s5, s6, s92
        s_cmp_lt_u32 s5, s4
        s_cbranch_scc1 L_spin
        """)
    k("L_fin:")
    if stamps:
        k("s_mov_b64 exec, -1\ns_waitcnt vmcnt(0)")
        k.stamp(9)
        k.dump_stamps(18, n=12, vtmp=40)
        k("L_end:")
    text = k.finish(vg, 96)
    text = add_touch_points(text, limit="L_cons")
    return text.replace("L_cons:", f".org {NAME}_kernel + 2176\nL_cons:")

from gen4 import parse
if __name__ == "__main__":
    names = []
    for spec in sys.argv[1:]:
        nm = "v8_" + spec.replace(",", "_").replace("=", "").replace("+", "") + ".s"
        open(nm, "w").write(gen(**parse(spec)))
        names.append(nm)
    print(" ".join(names))
```
